```python
import torch

def _softmax(x, axis=-1):
    return torch.softmax(x, dim=axis)
def _gelu(x):
    return torch.nn.functional.gelu(x, approximate="tanh")
def _silu(x):
    return torch.nn.functional.silu(x)
def _sigmoid(x):
    return torch.sigmoid(x)
def _layernorm(x, axis=-1, eps=1e-5):
    m = x.mean(dim=axis, keepdim=True)
    v = x.var(dim=axis, keepdim=True, unbiased=False)
    return (x - m) / torch.sqrt(v + eps)
def _scatter_add(tgt, idx, src, axis=0):
    return tgt.clone().index_add_(axis, idx, src)
def _segment_sum(src, seg, n):
    out = torch.zeros((n,) + src.shape[1:], dtype=src.dtype)
    return out.index_add_(0, seg, src)
def _pad(x, pw):
    flat = tuple(v for pair in reversed(pw) for v in pair)
    return torch.nn.functional.pad(x, flat)

kernel_name = 'standalone__mha_block_cached__near_ridge'

def setup_inputs():

    _w = (lambda a: (lambda t: t.to(torch.bfloat16) if t.is_floating_point() else t)(torch.as_tensor(a)))
    B, Sq, D = 8, 192, 512
    H, Sk, Dh = 32, 512, 128
    return {
        "x": _w((lambda *s: torch.randn(*s, dtype=torch.bfloat16) * 0.8)(B, Sq, D)),
        "k_cache": _w((lambda *s: torch.randn(*s, dtype=torch.bfloat16) * 0.8)(B, H, Sk, Dh)),
        "v_cache": _w((lambda *s: torch.randn(*s, dtype=torch.bfloat16) * 0.05)(B, H, Sk, Dh)),
        "wq": _w((lambda *s: torch.randn(*s, dtype=torch.bfloat16) * 0.8)(D, H * Dh) * (D ** -0.5)),
        "wo": _w((lambda *s: torch.randn(*s, dtype=torch.bfloat16) * 0.05)(H * Dh, D) * ((H * Dh) ** -0.5)),
    }

def reference(x, k_cache, v_cache, wq, wo):
    B, Sq, D = x.shape
    H, Dh = 32, 128
    q = (lambda x, *d: x.permute(*d))((x @ wq).reshape(B, Sq, H, Dh), 0, 2, 1, 3)
    scores = torch.einsum("bhqd,bhkd->bhqk", q, k_cache) * (Dh ** -0.5)
    p = _softmax(scores, axis=-1)
    o = torch.einsum("bhqk,bhkd->bhqd", p, v_cache)
    return (lambda x, *d: x.permute(*d))(o, 0, 2, 1, 3).reshape(B, Sq, H * Dh) @ wo
```

```python
import re


def R(prefix, lo, n=1):
    return [f'{prefix}{i}' for i in range(lo, lo + n)]


def rng(prefix, lo, n):
    return f'{prefix}{lo}' if n == 1 else f'{prefix}[{lo}:{lo + n - 1}]'


class Op:
    __slots__ = ('text', 'kind', 'defs', 'uses', 'cuses', 'win', 'idx', 'preds', 'succs', 'latest', 'gap',
                 'bb', 'note', 'early', 'prio')

    def __init__(self, text, kind, defs=(), uses=(), cuses=(), win=None, note='', early=None, prio=0):
        self.text = text
        self.kind = kind
        self.defs = list(defs)
        self.uses = list(uses)
        self.cuses = list(cuses)
        self.win = win
        self.early = early
        self.note = note
        self.prio = prio
        self.preds = []
        self.succs = []
        self.bb = None
        self.gap = None


VALU_KINDS = ('valu', 'trans', 'perm')
VM_KINDS = ('vml', 'dma', 'vms')
DS_KINDS = ('ds', 'dsw')


def is_real(r):
    return ':' not in r


def edge_lat(p, s, typ):
    if typ == 'RAW':
        if p.kind == 'mfma':
            if s.kind == 'mfma':
                return 1 if set(p.defs) == set(s.cuses) and not (set(p.defs) & (set(s.uses) - set(s.cuses))) else 5
            return 5
        if p.kind == 'ds':
            return DS_LAT if s.kind == 'mfma' else (DS_LAT if s.kind != 'bar' else 4)
        if p.kind in ('vml', 'dma'):
            return 1
        if p.kind == 'trans':
            return 1 if s.kind != 'mfma' else 2
        if p.kind in ('valu', 'perm'):
            if s.kind == 'mfma':
                return 2
            if s.kind == 'perm':
                return 1
            return 0 if s.kind in ('valu', 'trans') else 1
        if p.kind == 'bar':
            return 0
        if p.kind == 'salu':
            return 1 if s.kind in VM_KINDS else 0
        return 0
    if typ == 'WAR':
        if p.kind == 'mfma':
            if s.kind in VALU_KINDS and set(p.cuses) & set(s.defs):
                return 3
            return 1 if s.kind == 'mfma' else 0
        if p.kind == 'vms':
            return 1
        return 1 if s.kind == 'mfma' else 0
    if p.kind == 'mfma':
        return 1 if s.kind == 'mfma' else 5
    return 1 if s.kind == 'mfma' else 0


DS_LAT = 7


def build_deps(ops):
    lastw = {}
    readers = {}
    for i, o in enumerate(ops):
        o.idx = i
        o.preds = []
        o.succs = []
    for o in ops:
        e = {}
        for r in o.uses:
            w = lastw.get(r)
            if w is not None:
                l = edge_lat(w, o, 'RAW')
                e[w] = max(e.get(w, -1), l)
        for r in o.defs:
            w = lastw.get(r)
            if w is not None:
                l = edge_lat(w, o, 'WAW') if is_real(r) else 0
                e[w] = max(e.get(w, -1), l)
            for rd in readers.get(r, ()):
                if rd is not o:
                    l = edge_lat(rd, o, 'WAR') if is_real(r) else 0
                    e[rd] = max(e.get(rd, -1), l)
        for p, l in e.items():
            o.preds.append((p, l))
            p.succs.append((o, l))
        for r in o.uses:
            readers.setdefault(r, []).append(o)
        for r in o.defs:
            lastw[r] = o
            readers[r] = []
    return ops


COST = {'valu': 4, 'perm': 4, 'trans': 8, 'ds': 4, 'dsw': 8, 'vml': 8, 'dma': 8, 'vms': 8, 'salu': 0, 'bar': 4,
        'other': 4}


def schedule(ops, verbose=False, name=''):
    build_deps(ops)
    bb = [o for o in ops if o.kind == 'mfma']
    for i, o in enumerate(bb):
        o.bb = i
        o.gap = i
    n = len(bb)
    BIG = n + 1000
    for o in reversed(ops):
        if o.kind == 'mfma':
            o.latest = o.bb
            continue
        lt = BIG
        for s, l in o.succs:
            if s.kind == 'mfma':
                lt = min(lt, s.bb - max(l, 1))
            else:
                lt = min(lt, s.latest - l)
        o.latest = lt
    fill = [o for o in ops if o.kind != 'mfma']
    placed = set()
    gaps = {g: [] for g in range(-1, n)}
    remaining = list(fill)
    over = 0

    def ready_gap(o):
        g = -1
        for p, l in o.preds:
            if p.kind == 'mfma':
                g = max(g, p.bb + max(l, 1) - 1)
            else:
                if p not in placed:
                    return None
                g = max(g, p.gap + l)
        return g

    def must_before(o, g):
        return o.hard <= g

    hard = {}
    for o in reversed(ops):
        if o.kind == 'mfma':
            hard[o] = o.bb - 1
            continue
        h = BIG
        for s, l in o.succs:
            h = min(h, hard[s])
        hard[o] = h

    for g in range(-1, n):
        cap = 8 if g >= 0 else 10 ** 9
        if g == n - 1:
            cap = 10 ** 9
        used = 0
        nsal = 0
        cur = gaps[g]
        has_vm = False
        has_valu = False
        while True:
            cands = []
            for o in remaining:
                rg = ready_gap(o)
                forced = hard[o] <= g
                if rg is None:
                    continue
                if forced:
                    cands.append((-1, o.latest, o.idx, o))
                    continue
                if rg > g and g < n - 1:
                    continue
                if o.early is not None and g < o.early:
                    continue
                if g == -1 and o.latest > -1:
                    continue
                if g < n - 1 and o.win is not None and o.latest < BIG // 2 and g < o.latest - o.win:
                    continue
                c = COST[o.kind]
                late = o.latest <= g
                if o.kind == 'salu':
                    if (nsal >= 1 or has_vm) and not late and cap < 10 ** 9:
                        continue
                else:
                    if used + c > cap and not late:
                        continue
                    if o.kind in VM_KINDS and (used > 0 or nsal > 0) and not late and cap < 10 ** 9:
                        continue
                    if o.kind in DS_KINDS + ('bar',) and has_valu and not late and cap < 10 ** 9:
                        continue
                cands.append((0, o.latest - o.prio, o.idx, o))
            if not cands:
                break
            cands.sort(key=lambda t: t[:3])
            o = cands[0][3]
            o.gap = g
            placed.add(o)
            remaining.remove(o)
            cur.append(o)
            if o.kind == 'salu':
                nsal += 1
                if nsal > 1:
                    used += 4
            else:
                used += COST[o.kind]
            if o.kind in VM_KINDS:
                has_vm = True
            if o.kind in VALU_KINDS:
                has_valu = True
        if 0 <= g < n - 1 and used > 8:
            over += used - 8
    assert not remaining, [o.text for o in remaining[:5]]
    out = []

    def order_gap(lst):
        res = []
        todo = list(lst)
        rank = lambda o: 0 if o.kind == 'salu' else (1 if o.kind in DS_KINDS + VM_KINDS + ('bar',) else 2)
        while todo:
            best = None
            for o in todo:
                if any(p in todo for p, _ in o.preds):
                    continue
                if best is None or (rank(o), lst.index(o)) < (rank(best), lst.index(best)):
                    best = o
            res.append(best)
            todo.remove(best)
        return res

    out += gaps[-1]
    for g in range(n):
        out.append(bb[g])
        out += order_gap(gaps[g]) if g < n - 1 else gaps[g]
    check_order(ops, out)
    if verbose:
        print(f'; sched {name}: {n} mfma, {len(fill)} fillers, overflow {over} clks, pre {len(gaps[-1])}, post {len(gaps[n-1])}')
    return out


def check_order(ops, out):
    pos = {o: i for i, o in enumerate(out)}
    assert len(pos) == len(ops)
    for o in ops:
        for p, _ in o.preds:
            assert pos[p] < pos[o], (p.text, o.text)


def W(vm=None, lgkm=None):
    t = 's_waitcnt'
    if vm is not None:
        t += f' vmcnt({vm})'
    if lgkm is not None:
        t += f' lgkmcnt({lgkm})'
    return Op(t, 'wait')


def insert_waits(ops, vmq=None, dsq=None, age=16):
    vmq = list(vmq or [])
    dsq = list(dsq or [])
    out = []
    i = 0
    n = len(ops)
    issue_pos = {}

    def need(o, q):
        regs = set(o.uses) | set(r for r in o.defs if is_real(r))
        k = -1
        for j, p in enumerate(q):
            if p.kind == 'vms':
                continue
            if regs & set(p.defs):
                k = j
        if 'ALLVM' in o.uses and q is vmq:
            k = len(q) - 1
        if 'ALLDS' in o.uses and q is dsq:
            k = len(q) - 1
        return k

    def emit_wait(kv, kd):
        nonlocal vmq, dsq
        vm = lg = None
        if kv >= 0:
            vm = len(vmq) - 1 - kv
            vmq[:] = vmq[kv + 1:]
        if kd >= 0:
            while kd + 1 < len(dsq) and len(out) - issue_pos.get(dsq[kd + 1], -10 ** 9) >= age:
                kd += 1
            lg = len(dsq) - 1 - kd
            if lg > 15:
                kd = len(dsq) - 1 - 15
                lg = 15
            dsq[:] = dsq[kd + 1:]
        if vm is not None or lg is not None:
            out.append(W(vm, lg))

    while i < n:
        o = ops[i]
        kv, kd = need(o, vmq), need(o, dsq)
        if o.kind in VM_KINDS and len(vmq) - (kv + 1) >= 63:
            kv = len(vmq) - 63
        emit_wait(kv, kd)
        out.append(o)
        issue_pos[o] = len(out)
        if o.kind in VM_KINDS:
            vmq.append(o)
        if o.kind in DS_KINDS:
            dsq.append(o)
        if o.kind == 'wait':
            m = re.search(r'vmcnt\((\d+)\)', o.text)
            if m:
                c = int(m.group(1))
                vmq[:] = vmq[max(0, len(vmq) - c):] if c else []
            m = re.search(r'lgkmcnt\((\d+)\)', o.text)
            if m:
                c = int(m.group(1))
                dsq[:] = dsq[max(0, len(dsq) - c):] if c else []
        if o.kind == 'mfma':
            j = i + 1
            kd = -1
            while j < n:
                p = ops[j]
                kd = max(kd, need(p, dsq))
                if p.kind == 'mfma':
                    break
                j += 1
            first_vm = i + 1 < n and ops[i + 1].kind in VM_KINDS
            if kd >= 0 and j - i <= 4:
                emit_wait(-1, kd)
        i += 1
    return out, vmq, dsq


def states(o):
    if o.kind == 'nop':
        return int(o.text.split()[1]) + 1
    return 1


def hazard_need(p, s):
    pd = set(r for r in p.defs if is_real(r))
    su = set(r for r in s.uses if is_real(r))
    sd = set(r for r in s.defs if is_real(r))
    need = 0
    if p.kind == 'mfma':
        if s.kind == 'mfma':
            ab = su - set(s.cuses)
            if pd & ab:
                need = max(need, 8)
            if pd & set(s.cuses) and pd != set(s.cuses):
                need = max(need, 6)
            if (pd & sd) and not (pd & set(s.cuses)):
                need = max(need, 6)
        else:
            if pd & (su | sd):
                need = max(need, 8)
            if s.kind in VALU_KINDS and set(p.cuses) & sd:
                need = max(need, 3)
    if p.kind in VALU_KINDS:
        vd = set(r for r in pd if r[0] in 'va' and r != 'vcc')
        sg = pd - vd
        if s.kind == 'mfma' and vd & su:
            need = max(need, 2)
        if s.kind == 'perm' and vd & (su | sd):
            need = max(need, 2)
        if p.kind == 'trans' and s.kind in VALU_KINDS and vd & su:
            need = max(need, 1)
        if 'readfirstlane' in s.text or 'readlane' in s.text:
            if vd & su:
                need = max(need, 1)
        if 'dpp' in s.text or 'row_' in s.text:
            if vd & su:
                need = max(need, 2)
        if sg & su:
            if s.kind in VM_KINDS:
                need = max(need, 5)
            elif s.kind in VALU_KINDS:
                need = max(need, 2)
            else:
                need = max(need, 4)
    if p.kind == 'salu' and 'm0' in pd and s.kind == 'dma':
        need = max(need, 1)
    if p.kind == 'vms':
        pu = set(r for r in p.uses if is_real(r) and r[0] in 'va')
        if pu & sd and s.kind not in ('salu', 'bar', 'wait'):
            need = max(need, 2)
    if p.kind == 'salu' and 'exec' in pd and s.kind == 'perm':
        need = max(need, 0)
    return need


def pad_hazards(ops):
    out = []
    added = 0
    for s in ops:
        req = 0
        dist = 0
        for p in reversed(out):
            if dist >= 8:
                break
            nd = hazard_need(p, s)
            if nd > dist:
                req = max(req, nd - dist)
            dist += states(p)
        if req:
            out.append(Op(f's_nop {req - 1}', 'nop'))
            added += req
        out.append(s)
    return out, added


def estimate(ops):
    t = 0
    mf_free = 0
    prev = None
    for o in ops:
        if o.kind == 'mfma':
            t = max(t, mf_free)
            mf_free = t + 16
            t += 8
        elif o.kind in ('salu', 'wait', 'nop', 'bar'):
            c = 4 * states(o)
            if prev is not None and prev.kind == 'mfma':
                c -= 4
            t += c
        elif o.kind in VM_KINDS:
            t += 8 if (prev is not None and prev.kind == 'mfma') else 12
        elif o.kind == 'trans':
            t += 8
        elif o.kind in DS_KINDS:
            t += 4 + (8 if prev is not None and prev.kind in VALU_KINDS else 0)
        else:
            t += 4
        prev = o
    return max(t, mf_free)
```

```python
import sys, os, struct, math
from sched import *
import sched

KNAME = 'standalone__mha_block_cached__near_ridge_kernel'
E = os.environ.get
KVF = {'0': '', 'nt': ' nt'}[E('KVF', 'nt')]
XF = {'0': '', 'nt': ' nt'}[E('XF', '0')]
WQF = {'0': '', 'nt': ' nt'}[E('WQF', '0')]
WOF = {'0': '', 'nt': ' nt'}[E('WOF', 'nt')]
STF = {'0': '', 'sc1': ' sc1'}[E('STF', 'sc1')]
FT = int(E('FT', 0))
STAMP = int(E('STAMP', 0))
ROT = int(E('ROT', 1))
XLIN = int(E('XLIN', 0))
SH = 0 if int(E('NOSHIFT', 0)) else 8
NOX = int(E('NOX', 0))

WOFF = 0x100000
OOFF = 0x600000
WQP = 16416
SCALE = struct.unpack('<I', struct.pack('<f', math.log2(math.e) / math.sqrt(128.0)))[0]


def v(i, n=1): return rng('v', i, n)
def a(i, n=1): return rng('a', i, n)
def s(i, n=1): return rng('s', i, n)


class Prog:
    def __init__(self):
        self.ops = []

    def add(self, op):
        self.ops.append(op)
        return op

    def salu(self, text, defs=(), uses=(), **k):
        d = list(defs)
        if not text.startswith(('s_mov', 's_mul', 's_load', 's_getpc', 's_cselect')):
            d.append('scc')
        return self.add(Op(text, 'salu', d, uses, **k))

    def valu(self, text, defs=(), uses=(), kind='valu', **k):
        return self.add(Op(text, kind, defs, uses, **k))

    def mfma(self, d, A, B, c):
        dr = R(d[0], d[1], 4)
        cr = R(c[0], c[1], 4) if c else []
        ct = rng(c[0], c[1], 4) if c else '0'
        t = f'v_mfma_f32_16x16x32_bf16 {rng(d[0], d[1], 4)}, {rng(A[0], A[1], 4)}, {rng(B[0], B[1], 4)}, {ct}'
        return self.add(Op(t, 'mfma', dr, R(A[0], A[1], 4) + R(B[0], B[1], 4) + cr, cr))

    def raw(self, text, kind='other', defs=(), uses=(), **k):
        return self.add(Op(text, kind, defs, uses, **k))


V_L16 = 1
V_KD, V_VD = 2, 3
V_KA = 4
V_VA = 8
V_O = 16
V_Q = 112
V_S = 160
V_P = 208
V_NM = 232
V_T = 244
V_WA = V_P
V_XO = V_P + 4
V_WD = V_P + 8
V_OD = V_P + 12
V_OA = V_P + 16
A_X = 0
A_WR = 192; NWR = 12
A_WO = 240
A_KR = 0; NKR = 6
A_VR = 24; NVR = 6
A_L = 48
A_ONE = 60

S_X, S_WQ, S_K, S_V, S_WO, S_OD, S_WD = 8, 12, 16, 20, 24, 28, 32
S_XO, S_WQO = 40, 48
S_M0W, S_M0K, S_KVO, S_SC, S_4K, S_8K = 36, 37, 38, 39, 56, 57
S_B, S_H, S_ROT, S_W = 4, 5, 6, 3


def srd(p, base, lo_src, off, nrec):
    if off is None:
        p.salu(f's_mov_b32 s{base}, s{lo_src}', [f's{base}'], [f's{lo_src}'])
        p.salu(f's_mov_b32 s{base+1}, s{lo_src+1}', [f's{base+1}'], [f's{lo_src+1}'])
    else:
        p.salu(f's_add_u32 s{base}, s{lo_src}, {off}', [f's{base}'], [f's{lo_src}', off])
        p.salu(f's_addc_u32 s{base+1}, s{lo_src+1}, 0', [f's{base+1}'], [f's{lo_src+1}', 'scc'])
    if isinstance(nrec, int):
        p.salu(f's_mov_b32 s{base+2}, {nrec}', [f's{base+2}'])
    else:
        p.salu(f's_sub_u32 s{base+2}, {nrec[0]}, {nrec[1]}', [f's{base+2}'], [nrec[1]])
    p.salu(f's_mov_b32 s{base+3}, 0x20000', [f's{base+3}'])


def stamp(p, i, after=None):
    if STAMP:
        p.raw(f's_mem{"real" if STAMP == 1 else ""}time s[{80+2*i}:{81+2*i}]', 'salu', [f's{80+2*i}', f's{81+2*i}'], [after] if after else [], prio=10**6)


def k1_prologue(p):
    T = V_T
    p.raw('s_load_dwordx8 s[64:71], s[0:1], 0', 'salu', R('s', 64, 8))
    p.raw('s_load_dwordx8 s[72:79], s[0:1], 32', 'salu', R('s', 72, 8))
    V = p.valu
    V(f'v_lshrrev_b32 v{T}, 6, v0', [f'v{T}'], ['v0'])
    V(f'v_and_b32 v{T+1}, 63, v0', [f'v{T+1}'], ['v0'])
    V(f'v_readfirstlane_b32 s{S_W}, v{T}', [f's{S_W}'], [f'v{T}'])
    V(f'v_lshrrev_b32 v{T+2}, 4, v{T+1}', [f'v{T+2}'], [f'v{T+1}'])
    V(f'v_and_b32 v{T+3}, 15, v0', [f'v{T+3}'], ['v0'])
    V(f'v_lshlrev_b32 v{V_L16}, 4, v{T+1}', [f'v{V_L16}'], [f'v{T+1}'])
    p.salu('s_and_b32 s7, s2, 7', ['s7'], ['s2'])
    p.salu(f's_lshl_b32 s{S_H}, s7, 2', [f's{S_H}'], ['s7'])
    p.salu('s_bfe_u32 s58, s2, 0x20003', ['s58'], ['s2'])
    p.salu(f's_add_u32 s{S_H}, s{S_H}, s58', [f's{S_H}'], [f's{S_H}', 's58'])
    p.salu(f's_lshr_b32 s{S_B}, s2, 5', [f's{S_B}'], ['s2'])
    if ROT:
        p.salu(f's_lshl_b32 s58, s58, 1', ['s58'], ['s58'])
        p.salu(f's_add_u32 s{S_ROT}, s58, s{S_B}', [f's{S_ROT}'], ['s58', f's{S_B}'])
    else:
        p.salu(f's_mov_b32 s{S_ROT}, 0', [f's{S_ROT}'])
    for i in range(8):
        p.salu(f's_add_u32 s{S_XO+i}, s{S_ROT}, {i}', [f's{S_XO+i}'], [f's{S_ROT}'])
        p.salu(f's_and_b32 s{S_XO+i}, s{S_XO+i}, 7', [f's{S_XO+i}'], [f's{S_XO+i}'])
        p.salu(f's_lshl_b32 s{S_WQO+i}, s{S_XO+i}, 19', [f's{S_WQO+i}'], [f's{S_XO+i}'])
        p.salu(f's_lshl_b32 s{S_XO+i}, s{S_XO+i}, 7', [f's{S_XO+i}'], [f's{S_XO+i}'])
    p.salu(f's_mul_i32 s{S_M0W}, s{S_W}, 4104', [f's{S_M0W}'], [f's{S_W}'])
    p.salu(f's_lshl_b32 s{S_M0K}, s{S_W}, 12', [f's{S_M0K}'], [f's{S_W}'])
    p.salu(f's_lshl_b32 s7, s{S_W}, 17', ['s7'], [f's{S_W}'])
    V(f'v_lshlrev_b32 v{T+4}, 2, v{T+2}', [f'v{T+4}'], [f'v{T+2}'])
    V(f'v_xor_b32 v{T+4}, v{T+4}, v{T+3}', [f'v{T+4}'], [f'v{T+4}', f'v{T+3}'])
    V(f'v_lshlrev_b32 v{T+4}, 4, v{T+4}', [f'v{T+4}'], [f'v{T+4}'])
    V(f'v_lshl_add_u32 v{T+4}, v{T+2}, 13, v{T+4}', [f'v{T+4}'], [f'v{T+4}', f'v{T+2}'])
    V(f'v_add_u32 v{V_WD}, s7, v{T+4}', [f'v{V_WD}'], [f'v{T+4}', 's7'])
    for j in range(1, 4):
        V(f'v_add_u32 v{V_WD+j}, {j*32768 - j*1024 - (SH if j >= 2 else 0)}, v{V_WD}', [f'v{V_WD+j}'], [f'v{V_WD}'])
    p.salu(f's_mul_i32 s58, s{S_W}, 49152', ['s58'], [f's{S_W}'])
    V(f'v_lshlrev_b32 v{T+5}, 4, v{T+2}', [f'v{T+5}'], [f'v{T+2}'])
    V(f'v_lshl_add_u32 v{T+5}, v{T+3}, 10, v{T+5}', [f'v{T+5}'], [f'v{T+5}', f'v{T+3}'])
    if XLIN:
        V(f'v_lshlrev_b32 v{T+5}, 3, v{V_L16}', [f'v{T+5}'], [f'v{V_L16}'])
        V(f'v_and_b32 v{T+5}, 0xfffffc00, v{T+5}', [f'v{T+5}'], [f'v{T+5}'])
        V(f'v_and_b32 v{T+6}, 0x70, v{V_L16}', [f'v{T+6}'], [f'v{V_L16}'])
        V(f'v_add_u32 v{T+5}, v{T+6}, v{T+5}', [f'v{T+5}'], [f'v{T+5}', f'v{T+6}'])
    V(f'v_add_u32 v{V_XO}, s58, v{T+5}', [f'v{V_XO}'], [f'v{T+5}', 's58'])
    for t in range(1, 3):
        V(f'v_add_u32 v{V_XO+t}, {t*16384}, v{V_XO}', [f'v{V_XO+t}'], [f'v{V_XO}'])
    p.raw('s_waitcnt lgkmcnt(0)', 'wait', [], R('s', 64, 16))
    p.salu(f's_lshl_b32 s7, s{S_H}, 8', ['s7'], [f's{S_H}'])
    srd(p, S_WQ, 70, 's7', ('0x400000', 's7'))
    p.salu(f's_mul_i32 s7, s{S_B}, 196608', ['s7'], [f's{S_B}'])
    srd(p, S_X, 64, 's7', 196608)


def k1_prologue2(p):
    T = V_T
    V = p.valu
    p.salu(f's_lshl_b32 s7, s{S_B}, 5', ['s7'], [f's{S_B}'])
    p.salu(f's_add_u32 s7, s7, s{S_H}', ['s7'], ['s7', f's{S_H}'])
    p.salu('s_lshl_b32 s7, s7, 17', ['s7'], ['s7'])
    srd(p, S_K, 66, 's7', 131072)
    srd(p, S_V, 68, 's7', 131072)
    p.salu(f's_lshl_b32 s58, s{S_W}, 2', ['s58'], [f's{S_W}'])
    V(f'v_add_u32 v{T+4}, s58, v{T+2}', [f'v{T+4}'], [f'v{T+2}', 's58'])
    V(f'v_xor_b32 v{T+4}, v{T+4}, v{T+3}', [f'v{T+4}'], [f'v{T+4}', f'v{T+3}'])
    V(f'v_lshlrev_b32 v{T+5}, 8, v{T+2}', [f'v{T+5}'], [f'v{T+2}'])
    V(f'v_add_u32 v{T+5}, s{S_M0K}, v{T+5}', [f'v{T+5}'], [f'v{T+5}', f's{S_M0K}'])
    V(f'v_lshl_add_u32 v{V_KD}, v{T+4}, 4, v{T+5}', [f'v{V_KD}'], [f'v{T+4}', f'v{T+5}'])
    p.salu(f's_and_b32 s58, s{S_W}, 1', ['s58'], [f's{S_W}'])
    p.salu('s_lshl_b32 s58, s58, 2', ['s58'], ['s58'])
    V(f'v_add_u32 v{T+4}, s58, v{T+2}', [f'v{T+4}'], [f'v{T+2}', 's58'])
    V(f'v_lshlrev_b32 v{T+4}, 1, v{T+4}', [f'v{T+4}'], [f'v{T+4}'])
    V(f'v_xor_b32 v{T+4}, v{T+4}, v{T+3}', [f'v{T+4}'], [f'v{T+4}', f'v{T+3}'])
    V(f'v_lshl_add_u32 v{V_VD}, v{T+4}, 4, v{T+5}', [f'v{V_VD}'], [f'v{T+4}', f'v{T+5}'])
    V(f'v_bfe_u32 v{T+6}, v0, 2, 2', [f'v{T+6}'], ['v0'])
    V(f'v_and_b32 v{T+7}, 3, v0', [f'v{T+7}'], ['v0'])
    V(f'v_and_b32 v{T+8}, 1, v{T+2}', [f'v{T+8}'], [f'v{T+2}'])
    V(f'v_lshrrev_b32 v{T+4}, 1, v{T+2}', [f'v{T+4}'], [f'v{T+2}'])
    V(f'v_mul_u32_u24 v{T+4}, 4104, v{T+4}', [f'v{T+4}'], [f'v{T+4}'])
    V(f'v_mul_u32_u24 v{T+5}, 2056, v{T+8}', [f'v{T+5}'], [f'v{T+8}'])
    V(f'v_add_u32 v{T+4}, v{T+4}, v{T+5}', [f'v{T+4}'], [f'v{T+4}', f'v{T+5}'])
    V(f'v_lshl_add_u32 v{T+4}, v{T+6}, 8, v{T+4}', [f'v{T+4}'], [f'v{T+4}', f'v{T+6}'])
    V(f'v_lshl_add_u32 v{T+4}, v{T+7}, 4, v{T+4}', [f'v{T+4}'], [f'v{T+4}', f'v{T+7}'])
    for ks in range(4):
        V(f'v_xor_b32 v{T+5}, {ks}, v{T+6}', [f'v{T+5}'], [f'v{T+6}'])
        V(f'v_lshl_add_u32 v{V_WA+ks}, v{T+5}, 6, v{T+4}', [f'v{V_WA+ks}'], [f'v{T+5}', f'v{T+4}'])


def k1_prologue3(p, kslot0, vslot0):
    T = V_T
    V = p.valu
    V(f'v_lshlrev_b32 v{T+4}, 8, v{T+7}', [f'v{T+4}'], [f'v{T+7}'])
    V(f'v_lshl_add_u32 v{T+4}, v{T+6}, 12, v{T+4}', [f'v{T+4}'], [f'v{T+4}', f'v{T+6}'])
    V(f'v_add_u32 v{T+4}, {kslot0*16384}, v{T+4}', [f'v{T+4}'], [f'v{T+4}'])
    for ks in range(4):
        V(f'v_add_u32 v{T+5}, {4*ks}, v{T+2}', [f'v{T+5}'], [f'v{T+2}'])
        V(f'v_xor_b32 v{T+5}, v{T+5}, v{T+3}', [f'v{T+5}'], [f'v{T+5}', f'v{T+3}'])
        V(f'v_lshl_add_u32 v{V_KA+ks}, v{T+5}, 4, v{T+4}', [f'v{V_KA+ks}'], [f'v{T+5}', f'v{T+4}'])
    V(f'v_lshlrev_b32 v{T+4}, 12, v{T+2}', [f'v{T+4}'], [f'v{T+2}'])
    V(f'v_lshl_add_u32 v{T+4}, v{T+6}, 8, v{T+4}', [f'v{T+4}'], [f'v{T+4}', f'v{T+6}'])
    V(f'v_and_b32 v{T+5}, 1, v0', [f'v{T+5}'], ['v0'])
    V(f'v_lshl_add_u32 v{T+4}, v{T+5}, 3, v{T+4}', [f'v{T+4}'], [f'v{T+4}', f'v{T+5}'])
    V(f'v_add_u32 v{T+4}, {vslot0*16384}, v{T+4}', [f'v{T+4}'], [f'v{T+4}'])
    V(f'v_lshl_add_u32 v{T+9}, v{T+8}, 2, v{T+6}', [f'v{T+9}'], [f'v{T+8}', f'v{T+6}'])
    V(f'v_lshlrev_b32 v{T+9}, 1, v{T+9}', [f'v{T+9}'], [f'v{T+9}'])
    V(f'v_bfe_u32 v{T+10}, v0, 1, 1', [f'v{T+10}'], ['v0'])
    V(f'v_or_b32 v{T+9}, v{T+9}, v{T+10}', [f'v{T+9}'], [f'v{T+9}', f'v{T+10}'])
    for dt in range(8):
        V(f'v_xor_b32 v{T+5}, {2*dt}, v{T+9}', [f'v{T+5}'], [f'v{T+9}'])
        V(f'v_lshl_add_u32 v{V_VA+dt}, v{T+5}, 4, v{T+4}', [f'v{V_VA+dt}'], [f'v{T+5}', f'v{T+4}'])
    V(f'v_bfe_u32 v{T+4}, v0, 3, 3', [f'v{T+4}'], ['v0'])
    V(f'v_and_b32 v{T+5}, 7, v0', [f'v{T+5}'], ['v0'])
    V(f'v_lshlrev_b32 v{T+11}, 1, v{T+2}', [f'v{T+11}'], [f'v{T+2}'])
    V(f'v_xor_b32 v{T+5}, v{T+5}, v{T+11}', [f'v{T+5}'], [f'v{T+5}', f'v{T+11}'])
    V(f'v_lshlrev_b32 v{T+5}, 4, v{T+5}', [f'v{T+5}'], [f'v{T+5}'])
    V(f'v_lshl_add_u32 v{V_OD}, v{T+4}, 10, v{T+5}', [f'v{V_OD}'], [f'v{T+4}', f'v{T+5}'])
    for j in range(1, 4):
        V(f'v_add_u32 v{V_OD+j}, {j*7168}, v{V_OD}', [f'v{V_OD+j}'], [f'v{V_OD}'])
    V(f'v_lshl_add_u32 v{T+4}, v{T+2}, 2, v{T+6}', [f'v{T+4}'], [f'v{T+2}', f'v{T+6}'])
    V(f'v_and_b32 v{T+5}, 6, v{T+4}', [f'v{T+5}'], [f'v{T+4}'])
    V(f'v_or_b32 v{T+5}, v{T+5}, v{T+10}', [f'v{T+5}'], [f'v{T+5}', f'v{T+10}'])
    V(f'v_lshlrev_b32 v{T+4}, 7, v{T+4}', [f'v{T+4}'], [f'v{T+4}'])
    V(f'v_and_b32 v{T+11}, 1, v0', [f'v{T+11}'], ['v0'])
    V(f'v_lshl_add_u32 v{T+4}, v{T+11}, 3, v{T+4}', [f'v{T+4}'], [f'v{T+4}', f'v{T+11}'])
    V(f'v_add_u32 v{T+4}, s{S_M0K}, v{T+4}', [f'v{T+4}'], [f'v{T+4}', f's{S_M0K}'])
    for n4 in range(4):
        V(f'v_xor_b32 v{T+11}, {2*n4}, v{T+5}', [f'v{T+11}'], [f'v{T+5}'])
        V(f'v_lshl_add_u32 v{V_OA+n4}, v{T+11}, 4, v{T+4}', [f'v{V_OA+n4}'], [f'v{T+11}', f'v{T+4}'])
    p.salu('s_lshr_b32 s58, s2, 3', ['s58'], ['s2'])
    p.salu('s_lshl_b32 s58, s58, 2', ['s58'], ['s58'])
    p.salu(f's_add_u32 s58, s58, s{S_W}', ['s58'], ['s58', f's{S_W}'])
    p.salu('s_and_b32 s59, s2, 7', ['s59'], ['s2'])
    p.salu('s_lshl_b32 s7, s58, 15', ['s7'], ['s58'])
    p.salu('s_lshl_b32 s60, s59, 7', ['s60'], ['s59'])
    p.salu('s_add_u32 s7, s7, s60', ['s7'], ['s7', 's60'])
    srd(p, S_WO, 72, 's7', ('0x400000', 's7'))
    p.salu('s_add_u32 s7, s60, s58', ['s7'], ['s60', 's58'])
    p.salu('s_lshl_b32 s7, s7, 12', ['s7'], ['s7'])
    p.salu(f's_add_u32 s7, s7, {WOFF}', ['s7'], ['s7'])
    srd(p, S_WD, 78, 's7', 4096)
    p.salu(f's_lshl_b32 s7, s{S_B}, 2', ['s7'], [f's{S_B}'])
    p.salu(f's_add_u32 s7, s7, s{S_W}', ['s7'], ['s7', f's{S_W}'])
    p.salu('s_lshl_b32 s7, s7, 5', ['s7'], ['s7'])
    p.salu(f's_add_u32 s7, s7, s{S_H}', ['s7'], ['s7', f's{S_H}'])
    p.salu('s_mul_i32 s7, s7, 12288', ['s7'], ['s7'])
    p.salu(f's_add_u32 s7, s7, {OOFF}', ['s7'], ['s7'])
    srd(p, S_OD, 78, 's7', 12288)
    p.salu(f's_mov_b32 s{S_SC}, {SCALE:#x}', [f's{S_SC}'])
    p.salu(f's_mov_b32 s{S_4K}, 4096', [f's{S_4K}'])
    p.salu(f's_mov_b32 s{S_8K}, 8192', [f's{S_8K}'])


def dma_wq(p, pos):
    p.salu(f's_add_u32 m0, s{S_M0W}, {pos*WQP}', ['m0'], [f's{S_M0W}'])
    for j in range(4):
        off = j * 1024 + (SH if j >= 2 else 0)
        p.raw(f'buffer_load_dwordx4 v{V_WD+j}, {s(S_WQ,4)}, s{S_WQO+pos} offen offset:{off}{WQF} lds', 'dma',
              [f'D:wq{pos}', 'VMORD:'], [f'v{V_WD+j}', 'm0', f's{S_WQO+pos}'] + R('s', S_WQ, 4))


def load_x(p, pos):
    for e in range(2 if not NOX else 0):
        for t in range(3):
            d = A_X + (pos * 6 + e * 3 + t) * 4
            p.raw(f'buffer_load_dwordx4 {a(d,4)}, v{V_XO+t}, {s(S_X,4)}, s{S_XO+pos} offen offset:{e*64 if not XLIN else 0}{XF}', 'vml',
                  R('a', d, 4) + ['VMORD:'], [f'v{V_XO+t}', f's{S_XO+pos}'] + R('s', S_X, 4))


def dma_kv(p, which, J, slot, free=None, **k):
    S, vo = (S_K, V_KD) if which == 'K' else (S_V, V_VD)
    u = [free] if free else []
    k.setdefault('prio', 10**5)
    p.salu(f's_add_u32 m0, s{S_M0K}, {slot*16384}', ['m0'], [f's{S_M0K}'] + u, **k)
    p.salu(f's_mov_b32 s{S_KVO}, {J*16384}', [f's{S_KVO}'], u, **k)
    for j in range(4):
        p.raw(f'buffer_load_dwordx4 v{vo}, {s(S,4)}, s{S_KVO} offen offset:{j*1024}{KVF} lds', 'dma',
              [f'D:{which}{J}', 'VMORD:'], [f'v{vo}', 'm0', f's{S_KVO}'] + R('s', S, 4) + u, **k)


def barrier(p, uses, defs, **k):
    return p.raw('s_barrier', 'bar', list(defs) + ['BARORD:'], list(uses), **k)


def qacc(ks, b2, t): return V_O + ((ks * 2 + b2) * 3 + t) * 4
def oacc(dt, t): return V_O + (dt * 3 + t) * 4
def qfrag(ks, t): return V_Q + (ks * 3 + t) * 4
def sreg(st, u, t): return V_S + (st & 1) * 24 + (u * 3 + t) * 4
def preg(st, t): return V_P + (st & 1) * 12 + t * 4


KSLOT = [9, 2, 4, 6, 8, 9, 2, 4]
VSLOT = [1, 3, 5, 0, 7, 1, 3, 5]
WOSLOT = 0


def k1_main(p):
    DSWIN = int(E('DSWIN', 12))
    wr = [0]
    wa_base = [0]

    def wq_frag(pos, e, ks, b2):
        if pos >= 4 and wa_base[0] == 0:
            wa_base[0] = 4 * WQP
            for k2 in range(4):
                p.valu(f'v_add_u32 v{V_WA+k2}, {4*WQP}, v{V_WA+k2}', [f'v{V_WA+k2}'], [f'v{V_WA+k2}'])
        d = A_WR + (wr[0] % NWR) * 4
        wr[0] += 1
        for m in range(2):
            off = pos * WQP - wa_base[0] + e * 8208 + m * 1024 + 8 * b2
            p.raw(f'ds_read_b64_tr_b16 {a(d+2*m,2)}, v{V_WA+ks} offset:{off}', 'ds',
                  R('a', d + 2 * m, 2) + [f'R:wq{pos}'], [f'v{V_WA+ks}', f'L:wq{pos}'], win=DSWIN)
        return d

    def q_mfmas(pos, e, ks, b2):
        d = wq_frag(pos, e, ks, b2)
        for t in range(3):
            acc = qacc(ks, b2, t)
            first = pos == 0 and e == 0
            p.mfma(('v', acc), ('a', d), ('a', A_X + (pos * 6 + e * 3 + t) * 4), None if first else ('v', acc))

    def convert_q(ks):
        for t in range(3):
            for b2 in range(2):
                r0 = qacc(ks, b2, t)
                for i in range(4):
                    p.valu(f'v_mul_f32 v{r0+i}, s{S_SC}, v{r0+i}', [f'v{r0+i}'], [f'v{r0+i}', f's{S_SC}'])
                for h2 in range(2):
                    d = qfrag(ks, t) + 2 * b2 + h2
                    p.valu(f'v_cvt_pk_bf16_f32 v{d}, v{r0+2*h2}, v{r0+2*h2+1}', [f'v{d}'], R('v', r0 + 2 * h2, 2))

    after_q = {2: [('WO',)], 3: [('V', 0)], 4: [('K', 1)], 5: [('V', 1)], 6: [('K', 2)], 7: [('V', 2)]}
    for pos in range(8):
        uses = [f'D:wq{pos}']
        if pos >= 2:
            uses.append(f'R:wq{pos-2}')
        barrier(p, uses, [f'L:wq{pos}', f'F:q{pos}'], win=2)
        if pos == 0:
            stamp(p, 1, 'L:wq0')
            k1_prologue3(p, KSLOT[0], VSLOT[0])
        for it in after_q.get(pos, []):
            if it[0] == 'WO':
                p.salu(f's_add_u32 m0, s{S_M0K}, {WOSLOT*16384}', ['m0'], [f's{S_M0K}', f'F:q{pos}'])
                for j in range(4):
                    p.raw(f'buffer_load_dwordx4 v{V_OD+j}, {s(S_WO,4)}, 0 offen offset:{j*1024}{WOF} lds', 'dma',
                          ['D:wo', 'VMORD:'], [f'v{V_OD+j}', 'm0', f'F:q{pos}'] + R('s', S_WO, 4))
            else:
                dma_kv(p, it[0], it[1], (KSLOT if it[0] == 'K' else VSLOT)[it[1]], f'F:q{pos}')
        if pos == 6:
            for n4 in range(4):
                for m in range(2):
                    d = A_WO + n4 * 4 + 2 * m
                    p.raw(f'ds_read_b64_tr_b16 {a(d,2)}, v{V_OA+n4} offset:{WOSLOT*16384 + m*2048}', 'ds',
                          R('a', d, 2) + ['R:wo'], [f'v{V_OA+n4}', 'D:wo', f'F:q{pos}'])
            for n4 in range(4):
                d = A_WO + n4 * 4
                p.raw(f'buffer_store_dwordx4 {a(d,4)}, v{V_L16}, {s(S_WD,4)}, 0 offen offset:{n4*1024}{STF}', 'vms',
                      ['VMORD:'], R('a', d, 4) + [f'v{V_L16}'] + R('s', S_WD, 4))
        if pos < 7:
            for e in range(2):
                for ks in range(4):
                    for b2 in range(2):
                        q_mfmas(pos, e, ks, b2)
        else:
            for ks in range(4):
                for e in range(2):
                    for b2 in range(2):
                        q_mfmas(pos, e, ks, b2)
                convert_q(ks)
    p.valu(f'v_mov_b32 v{V_T+4}, 0x3f803f80', [f'v{V_T+4}'])
    for i in range(4):
        p.valu(f'v_accvgpr_write_b32 a{A_ONE+i}, v{V_T+4}', [f'a{A_ONE+i}'], [f'v{V_T+4}'])
    if not FT:
        for i in range(12):
            p.valu(f'v_mov_b32 v{V_NM+i}, 0', [f'v{V_NM+i}'])

    kr = [0]
    vr = [0]
    kbase = [KSLOT[0]]
    vbase = [VSLOT[0]]

    def k_frag(st, u, ks):
        J = st >> 1
        sl = KSLOT[J]
        if not (0 <= sl - kbase[0] <= 3):
            dlt = (sl - kbase[0]) * 16384
            kbase[0] = sl
            for k2 in range(4):
                p.valu(f'v_add_u32 v{V_KA+k2}, {dlt}, v{V_KA+k2}', [f'v{V_KA+k2}'], [f'v{V_KA+k2}'])
        d = A_KR + (kr[0] % NKR) * 4
        kr[0] += 1
        off = (sl - kbase[0]) * 16384 + (2 * (st & 1) + u) * 1024
        p.raw(f'ds_read_b128 {a(d,4)}, v{V_KA+ks} offset:{off}', 'ds',
              R('a', d, 4) + [f'R:K{J}'], [f'v{V_KA+ks}', f'L:K{J}'], win=DSWIN)
        return d

    def v_frag(st, dt):
        J = st >> 1
        sl = VSLOT[J]
        if not (0 <= sl - vbase[0] <= 3):
            dlt = (sl - vbase[0]) * 16384
            vbase[0] = sl
            for k2 in range(8):
                p.valu(f'v_add_u32 v{V_VA+k2}, {dlt}, v{V_VA+k2}', [f'v{V_VA+k2}'], [f'v{V_VA+k2}'])
        d = A_VR + (vr[0] % NVR) * 4
        vr[0] += 1
        for m in range(2):
            off = (sl - vbase[0]) * 16384 + (st & 1) * 2048 + m * 1024
            p.raw(f'ds_read_b64_tr_b16 {a(d+2*m,2)}, v{V_VA+dt} offset:{off}', 'ds',
                  R('a', d + 2 * m, 2) + [f'R:V{J}'], [f'v{V_VA+dt}', f'L:V{J}'], win=DSWIN)
        return d

    def qk(st):
        order = [(u, ks) for ks in range(4) for u in range(2)] if st == 0 else [(u, ks) for u in range(2) for ks in range(4)]
        for u, ks in order:
            d = k_frag(st, u, ks)
            for t in range(3):
                r0 = sreg(st, u, t)
                if ks == 0:
                    c = None if (FT and st <= 1) else ('v', V_NM + 4 * t)
                else:
                    c = ('v', r0)
                p.mfma(('v', r0), ('a', d), ('v', qfrag(ks, t)), c)

    def first_max():
        T = V_T
        for t in range(3):
            rs = [sreg(0, u, t) + i for u in range(2) for i in range(4)]
            m, x = T + 2 * t, T + 2 * t + 1
            p.valu(f'v_max3_f32 v{m}, v{rs[0]}, v{rs[1]}, v{rs[2]}', [f'v{m}'], [f'v{r}' for r in rs[:3]])
            p.valu(f'v_max3_f32 v{m}, v{m}, v{rs[3]}, v{rs[4]}', [f'v{m}'], [f'v{m}'] + [f'v{r}' for r in rs[3:5]])
            p.valu(f'v_max3_f32 v{m}, v{m}, v{rs[5]}, v{rs[6]}', [f'v{m}'], [f'v{m}'] + [f'v{r}' for r in rs[5:7]])
            p.valu(f'v_max_f32 v{m}, v{m}, v{rs[7]}', [f'v{m}'], [f'v{m}', f'v{rs[7]}'])
            for sw in ('v_permlane32_swap_b32', 'v_permlane16_swap_b32'):
                p.valu(f'v_mov_b32 v{x}, v{m}', [f'v{x}'], [f'v{m}'])
                p.valu(f'{sw} v{x}, v{m}', [f'v{x}', f'v{m}'], [f'v{x}', f'v{m}'], kind='perm')
                p.valu(f'v_max_f32 v{m}, v{m}, v{x}', [f'v{m}'], [f'v{m}', f'v{x}'])
            for i in range(4):
                p.valu(f'v_sub_f32 v{V_NM+4*t+i}, 0, v{m}', [f'v{V_NM+4*t+i}'], [f'v{m}'])

    def softmax(st):
        for t in range(3):
            for u in range(2):
                r0 = sreg(st, u, t)
                for i in range(4):
                    if FT and st <= 1:
                        p.valu(f'v_add_f32 v{r0+i}, v{r0+i}, v{V_NM+4*t}', [f'v{r0+i}'], [f'v{r0+i}', f'v{V_NM+4*t}'])
                    p.valu(f'v_exp_f32 v{r0+i}, v{r0+i}', [f'v{r0+i}'], [f'v{r0+i}'], kind='trans')
                for h2 in range(2):
                    d = preg(st, t) + 2 * u + h2
                    p.valu(f'v_cvt_pk_bf16_f32 v{d}, v{r0+2*h2}, v{r0+2*h2+1}', [f'v{d}'], R('v', r0 + 2 * h2, 2))

    def pv(st):
        def lsum():
            for t in range(3):
                p.mfma(('a', A_L + 4 * t), ('a', A_ONE), ('v', preg(st, t)), None if st == 0 else ('a', A_L + 4 * t))
        if st == 15:
            lsum()
            T = V_T
            for t in range(3):
                p.valu(f'v_accvgpr_read_b32 v{T+t}, a{A_L+4*t}', [f'v{T+t}'], [f'a{A_L+4*t}'])
                p.valu(f'v_rcp_f32 v{T+3+t}, v{T+t}', [f'v{T+3+t}'], [f'v{T+t}'], kind='trans')
        for dt in range(8):
            d = v_frag(st, dt)
            for t in range(3):
                acc = oacc(dt, t)
                p.mfma(('v', acc), ('a', d), ('v', preg(st, t)), None if st == 0 else ('v', acc))
            if st == 15 and dt & 1:
                ks = dt >> 1
                for t in range(3):
                    dst = V_S + (ks * 3 + t) * 4
                    for b2 in range(2):
                        r0 = oacc(2 * ks + b2, t)
                        for i in range(4):
                            p.valu(f'v_mul_f32 v{r0+i}, v{V_T+3+t}, v{r0+i}', [f'v{r0+i}'], [f'v{r0+i}', f'v{V_T+3+t}'])
                        for h2 in range(2):
                            p.valu(f'v_cvt_pk_bf16_f32 v{dst+2*b2+h2}, v{r0+2*h2}, v{r0+2*h2+1}', [f'v{dst+2*b2+h2}'],
                                   R('v', r0 + 2 * h2, 2))
                    k = ks * 3 + t
                    so = ['0', f's{S_4K}', f's{S_8K}'][k >> 2]
                    p.raw(f'buffer_store_dwordx4 {v(dst,4)}, v{V_L16}, {s(S_OD,4)}, {so} offen offset:{(k&3)*1024}{STF}', 'vms',
                          ['VMORD:'], R('v', dst, 4) + [f'v{V_L16}', f's{S_4K}', f's{S_8K}'] + R('s', S_OD, 4))
        if st != 15:
            lsum()

    barrier(p, ['D:K0', 'R:wq6', 'R:wo'], ['L:K0', 'F:qe'], win=2)
    dma_kv(p, 'K', 3, KSLOT[3], 'F:qe')
    dma_kv(p, 'V', 3, VSLOT[3], 'F:qe')
    stamp(p, 2, 'L:K0')
    qk(0)
    if FT:
        first_max()
    softmax(0)
    for st in range(16):
        J = st >> 1
        if st & 1 == 0:
            uses = [f'D:V{J}'] + ([f'D:K{J+1}'] if J < 7 else [])
            uses += [f'R:V{J-1}', f'R:K{J-1}'] if J >= 1 else ['R:wq7']
            barrier(p, uses, [f'L:V{J}', f'L:K{J+1}', f'F:a{J}'], win=2)
            if J == 2: stamp(p, 4, 'F:a2')
            if J == 6: stamp(p, 5, 'F:a6')
            if J == 0:
                dma_kv(p, 'K', 4, KSLOT[4], 'F:a0')
                dma_kv(p, 'V', 4, VSLOT[4], 'F:a0')
            elif J <= 3:
                dma_kv(p, 'K', J + 4, KSLOT[J + 4], f'F:a{J}')
                dma_kv(p, 'V', J + 4, VSLOT[J + 4], f'F:a{J}')
        if st < 15:
            qk(st + 1)
            softmax(st + 1)
        pv(st)


def finish(ops, name, vmq=None):
    ops, vq, dq = insert_waits(ops, vmq)
    ops, nn = pad_hazards(ops)
    print(f'; {name}: {len(ops)} instrs, est {estimate(ops)} clks, nops {nn}, waits {sum(o.kind == "wait" for o in ops)}',
          file=sys.stderr)
    return ops


def emit(L, ops):
    for o in ops:
        L.append('  ' + o.text)


def stamps_out(L, n, end, wsreg=78, slot0=0):
    L += ['  s_waitcnt lgkmcnt(0)',
          f'  s_mov_b32 s96, s{wsreg}', f'  s_mov_b32 s97, s{wsreg+1}', '  s_mov_b32 s98, 0x10000', '  s_mov_b32 s99, 0x20000']
    for r in range(2 * n):
        L.append(f'  v_mov_b32 v{4+r}, s{80+r}')
    L += ['  s_lshl_b32 s7, s2, 7', '  v_mov_b32 v2, s7', '  v_cmp_eq_u32 vcc, 0, v0', '  s_nop 4',
          '  s_and_saveexec_b64 s[94:95], vcc', f'  s_cbranch_execz {end}']
    for q in range(n):
        L.append(f'  buffer_store_dwordx2 v[{4+2*q}:{5+2*q}], v2, s[96:99], 0 offen offset:{8*(q+slot0)}')
    L.append('  s_waitcnt vmcnt(0)')


def gen_k1(L, name):
    L += [f'.globl {name}', '.p2align 8', f'.type {name},@function', f'{name}:']
    if STAMP:
        L.append('  s_memrealtime s[80:81]' if STAMP == 1 else '  s_memtime s[80:81]')
    L += ['  s_cmp_ge_u32 s2, 256', '  s_cbranch_scc1 L_k1_end']
    p = Prog()
    k1_prologue(p)
    dma_wq(p, 0); load_x(p, 0)
    dma_wq(p, 1); load_x(p, 1)
    k1_prologue2(p)
    dma_kv(p, 'K', 0, KSLOT[0])
    for pos in range(2, 8):
        dma_wq(p, pos); load_x(p, pos)
    pre = p.ops
    p = Prog()
    k1_main(p)
    body = schedule(p.ops, True, 'k1')
    tail = Prog()
    tail.raw('s_waitcnt vmcnt(0)', 'wait')
    stamp(tail, 3)
    emit(L, finish(pre + body + tail.ops, 'k1'))
    if STAMP:
        stamps_out(L, 6, 'L_k1_end')
    L += ['L_k1_end:', '  s_endpgm']


def gen_k2(L, name):
    L += [f'.globl {name}', '.p2align 8', f'.type {name},@function', f'{name}:']
    if STAMP:
        L.append('  s_memrealtime s[80:81]' if STAMP == 1 else '  s_memtime s[80:81]')
    L += ['  s_cmp_ge_u32 s2, 256', '  s_cbranch_scc1 L_k2_end']
    p = Prog()
    V = p.valu
    p.raw('s_load_dwordx8 s[72:79], s[0:1], 32', 'salu', R('s', 72, 8))
    V('v_lshrrev_b32 v2, 6, v0', ['v2'], ['v0'])
    V('v_and_b32 v3, 63, v0', ['v3'], ['v0'])
    V(f'v_readfirstlane_b32 s{S_W}, v2', [f's{S_W}'], ['v2'])
    V('v_lshlrev_b32 v1, 4, v3', ['v1'], ['v3'])
    p.salu('s_and_b32 s4, s2, 6', ['s4'], ['s2'])
    p.salu('s_bfe_u32 s7, s2, 0x10003', ['s7'], ['s2'])
    p.salu('s_add_u32 s4, s4, s7', ['s4'], ['s4', 's7'])
    p.salu('s_bfe_u32 s5, s2, 0x20004', ['s5'], ['s2'])
    p.salu('s_and_b32 s6, s2, 1', ['s6'], ['s2'])
    p.salu('s_lshl_b32 s6, s6, 2', ['s6'], ['s6'])
    p.salu('s_lshr_b32 s7, s2, 6', ['s7'], ['s2'])
    p.salu('s_add_u32 s6, s6, s7', ['s6'], ['s6', 's7'])
    for n in range(4):
        p.salu(f's_add_u32 s7, s{S_W}, {n}', ['s7'], [f's{S_W}'])
        p.salu('s_and_b32 s7, s7, 3', ['s7'], ['s7'])
        p.salu('s_lshl_b32 s58, s7, 10', ['s58'], ['s7'])
        V(f'v_add_u32 v{4+n}, s58, v1', [f'v{4+n}'], ['s58', 'v1'])
        p.salu('s_mul_i32 s58, s7, 9216', ['s58'], ['s7'])
        if n:
            p.salu(f's_add_u32 s58, s58, {(n-1)*3072}', ['s58'], ['s58'])
            V(f'v_add_u32 v{7+n}, s58, v1', [f'v{7+n}'], ['s58', 'v1'])
        else:
            V('v_add_u32 v11, s58, v1', ['v11'], ['s58', 'v1'])
    V('v_and_b32 v12, 15, v0', ['v12'], ['v0'])
    V('v_lshlrev_b32 v12, 10, v12', ['v12'], ['v12'])
    V('v_lshrrev_b32 v13, 4, v3', ['v13'], ['v3'])
    V('v_lshl_add_u32 v12, v13, 3, v12', ['v12'], ['v12', 'v13'])
    p.raw('s_waitcnt lgkmcnt(0)', 'wait', [], R('s', 72, 8))
    p.salu('s_lshl_b32 s7, s4, 2', ['s7'], ['s4'])
    p.salu('s_add_u32 s7, s7, s5', ['s7'], ['s7', 's5'])
    p.salu('s_lshl_b32 s7, s7, 2', ['s7'], ['s7'])
    p.salu(f's_add_u32 s7, s7, s{S_W}', ['s7'], ['s7', f's{S_W}'])
    p.salu('s_mul_i32 s7, s7, 98304', ['s7'], ['s7'])
    p.salu(f's_add_u32 s7, s7, {OOFF}', ['s7'], ['s7'])
    srd(p, 8, 78, 's7', 98304)
    p.salu('s_lshl_b32 s7, s6, 2', ['s7'], ['s6'])
    p.salu(f's_add_u32 s7, s7, s{S_W}', ['s7'], ['s7', f's{S_W}'])
    p.salu('s_lshl_b32 s7, s7, 17', ['s7'], ['s7'])
    p.salu(f's_add_u32 s7, s7, {WOFF}', ['s7'], ['s7'])
    srd(p, 12, 78, 's7', 131072)
    p.salu('s_mul_i32 s7, s4, 196608', ['s7'], ['s4'])
    p.salu('s_mul_i32 s58, s5, 49152', ['s58'], ['s5'])
    p.salu('s_add_u32 s7, s7, s58', ['s7'], ['s7', 's58'])
    p.salu('s_lshl_b32 s58, s6, 7', ['s58'], ['s6'])
    p.salu('s_add_u32 s7, s7, s58', ['s7'], ['s7', 's58'])
    p.salu(f's_lshl_b32 s58, s{S_W}, 5', ['s58'], [f's{S_W}'])
    p.salu('s_add_u32 s7, s7, s58', ['s7'], ['s7', 's58'])
    srd(p, 16, 74, 's7', ('1572864', 's7'))
    p.salu('s_mov_b32 s22, 16384', ['s22'])
    p.salu('s_mov_b32 s23, 32768', ['s23'])
    pre = p.ops
    p = Prog()
    ACC = 16
    NS = 9
    pool = [('a', i) for i in range(0, 256, 4)] + [('v', i) for i in range(64, 256, 4)]

    def regs(kk, j):
        return pool[(kk % 16) * 7 + j]

    def loads(kk, **k):
        p.salu(f's_mov_b32 s20, {kk*4096}', ['s20'], **k)
        p.salu(f's_mov_b32 s21, {kk*3072}', ['s21'], **k)
        for n in range(4):
            r = regs(kk, n)
            p.raw(f'buffer_load_dwordx4 {rng(r[0], r[1], 4)}, v{4+n}, s[12:15], s20 offen', 'vml',
                  R(r[0], r[1], 4) + ['VMORD:'], [f'v{4+n}', 's20'] + R('s', 12, 4), **k)
        for t in range(3):
            r = regs(kk, 4 + t)
            p.raw(f'buffer_load_dwordx4 {rng(r[0], r[1], 4)}, v1, s[8:11], s21 offen offset:{t*1024}', 'vml',
                  R(r[0], r[1], 4) + ['VMORD:'], ['v1', 's21'] + R('s', 8, 4), **k)

    for kk in range(NS):
        loads(kk)
    pre += p.ops
    p = Prog()
    for kk in range(32):
        for n in range(4):
            for t in range(3):
                acc = ACC + (n * 3 + t) * 4
                p.mfma(('v', acc), regs(kk, n), regs(kk, 4 + t), None if kk == 0 else ('v', acc))
            if n == 0 and kk + NS < 32:
                loads(kk + NS, early=kk * 12)
    body = schedule(p.ops, True, 'k2')
    p = Prog()
    V = p.valu
    for n in range(1, 4):
        for t in range(3):
            acc = ACC + (n * 3 + t) * 4
            p.raw(f'ds_write_b128 v{7+n}, {v(acc,4)} offset:{t*1024}', 'dsw', ['W:red'], [f'v{7+n}'] + R('v', acc, 4))
    barrier(p, ['W:red'], ['L:red'])
    for sl in range(3):
        for t in range(3):
            d = 64 + (sl * 3 + t) * 4
            p.raw(f'ds_read_b128 {v(d,4)}, v11 offset:{(sl*3+t)*1024}', 'ds', R('v', d, 4), ['v11', 'L:red'])
    for t in range(3):
        acc = ACC + t * 4
        for sl in range(3):
            d = 64 + (sl * 3 + t) * 4
            for i in range(4):
                V(f'v_add_f32 v{acc+i}, v{acc+i}, v{d+i}', [f'v{acc+i}'], [f'v{acc+i}', f'v{d+i}'])
        for h2 in range(2):
            V(f'v_cvt_pk_bf16_f32 v{112+2*t+h2}, v{acc+2*h2}, v{acc+2*h2+1}', [f'v{112+2*t+h2}'], R('v', acc + 2 * h2, 2))
        so = ['0', 's22', 's23'][t]
        p.raw(f'buffer_store_dwordx2 {v(112+2*t,2)}, v12, s[16:19], {so} offen', 'vms', [],
              R('v', 112 + 2 * t, 2) + ['v12', 's22', 's23'] + R('s', 16, 4))
    p.raw('s_waitcnt vmcnt(0)', 'wait')
    stamp(p, 1)
    emit(L, finish(pre + body + p.ops, 'k2'))
    if STAMP:
        stamps_out(L, 2, 'L_k2_end', slot0=6)
    L += ['L_k2_end:', '  s_endpgm']


def desc(L, name):
    L += ['.section .rodata,"a"', '.p2align 6', f'.amdhsa_kernel {name}', '  .amdhsa_next_free_vgpr 512',
          '  .amdhsa_next_free_sgpr 102', '  .amdhsa_accum_offset 256', '  .amdhsa_group_segment_fixed_size 0',
          '  .amdhsa_kernarg_size 64', '  .amdhsa_user_sgpr_count 2', '  .amdhsa_user_sgpr_kernarg_segment_ptr 1',
          '  .amdhsa_system_sgpr_workgroup_id_x 1', '.end_amdhsa_kernel']


def main():
    out = sys.argv[1]
    L = ['; @launch kernel=attn_kernel grid=(256,1,1) block=(256,1,1) lds=163840',
         '; @launch kernel=oproj_kernel grid=(256,1,1) block=(256,1,1) lds=36864',
         '.amdgcn_target "amdgcn-amd-amdhsa--gfx950"', '.text']
    gen_k1(L, 'attn_kernel')
    gen_k2(L, 'oproj_kernel')
    desc(L, 'attn_kernel')
    desc(L, 'oproj_kernel')
    open(out, 'w').write('\n'.join(L) + '\n')


if __name__ == '__main__':
    main()
```

```python
import re


def R(prefix, lo, n=1):
    return [f'{prefix}{i}' for i in range(lo, lo + n)]


def rng(prefix, lo, n):
    return f'{prefix}{lo}' if n == 1 else f'{prefix}[{lo}:{lo + n - 1}]'


class Op:
    __slots__ = ('text', 'kind', 'defs', 'uses', 'cuses', 'win', 'idx', 'preds', 'succs', 'latest', 'gap',
                 'bb', 'note', 'early', 'prio')

    def __init__(self, text, kind, defs=(), uses=(), cuses=(), win=None, note='', early=None, prio=0):
        self.text = text
        self.kind = kind
        self.defs = list(defs)
        self.uses = list(uses)
        self.cuses = list(cuses)
        self.win = win
        self.early = early
        self.note = note
        self.prio = prio
        self.preds = []
        self.succs = []
        self.bb = None
        self.gap = None


VALU_KINDS = ('valu', 'trans', 'perm')
VM_KINDS = ('vml', 'dma', 'vms')
DS_KINDS = ('ds', 'dsw')


def is_real(r):
    return ':' not in r


def edge_lat(p, s, typ):
    if typ == 'RAW':
        if p.kind == 'mfma':
            if s.kind == 'mfma':
                return 1 if set(p.defs) == set(s.cuses) and not (set(p.defs) & (set(s.uses) - set(s.cuses))) else 5
            return 5
        if p.kind == 'ds':
            return DS_LAT if s.kind == 'mfma' else (DS_LAT if s.kind != 'bar' else 4)
        if p.kind in ('vml', 'dma'):
            return 1
        if p.kind == 'trans':
            return 1 if s.kind != 'mfma' else 2
        if p.kind in ('valu', 'perm'):
            if s.kind == 'mfma':
                return 2
            if s.kind == 'perm':
                return 1
            return 0 if s.kind in ('valu', 'trans') else 1
        if p.kind == 'bar':
            return 0
        if p.kind == 'salu':
            return 1 if s.kind in VM_KINDS else 0
        return 0
    if typ == 'WAR':
        if p.kind == 'mfma':
            if s.kind in VALU_KINDS and set(p.cuses) & set(s.defs):
                return 3
            return 1 if s.kind == 'mfma' else 0
        if p.kind == 'vms':
            return 1
        return 1 if s.kind == 'mfma' else 0
    if p.kind == 'mfma':
        return 1 if s.kind == 'mfma' else 5
    return 1 if s.kind == 'mfma' else 0


DS_LAT = 7
TT_LAG = 4


def build_deps(ops):
    lastw = {}
    readers = {}
    for i, o in enumerate(ops):
        o.idx = i
        o.preds = []
        o.succs = []
    for o in ops:
        e = {}
        for r in o.uses:
            w = lastw.get(r)
            if w is not None:
                l = edge_lat(w, o, 'RAW')
                e[w] = max(e.get(w, -1), l)
        for r in o.defs:
            w = lastw.get(r)
            if w is not None:
                l = edge_lat(w, o, 'WAW') if is_real(r) else 0
                e[w] = max(e.get(w, -1), l)
            for rd in readers.get(r, ()):
                if rd is not o:
                    l = edge_lat(rd, o, 'WAR') if is_real(r) else 0
                    e[rd] = max(e.get(rd, -1), l)
        for p, l in e.items():
            o.preds.append((p, l))
            p.succs.append((o, l))
        for r in o.uses:
            readers.setdefault(r, []).append(o)
        for r in o.defs:
            lastw[r] = o
            readers[r] = []
    return ops


COST = {'valu': 4, 'perm': 4, 'trans': 8, 'ds': 4, 'dsw': 8, 'vml': 8, 'dma': 8, 'vms': 8, 'salu': 0, 'bar': 4,
        'other': 4}


def schedule(ops, verbose=False, name=''):
    build_deps(ops)
    bb = [o for o in ops if o.kind == 'mfma']
    for i, o in enumerate(bb):
        o.bb = i
        o.gap = i
    n = len(bb)
    BIG = n + 1000
    for o in reversed(ops):
        if o.kind == 'mfma':
            o.latest = o.bb
            continue
        lt = BIG
        for s, l in o.succs:
            if s.kind == 'mfma':
                lt = min(lt, s.bb - max(l, 1))
            else:
                lt = min(lt, s.latest - l)
        o.latest = lt
    fill = [o for o in ops if o.kind != 'mfma']
    placed = set()
    gaps = {g: [] for g in range(-1, n)}
    remaining = list(fill)
    over = 0

    def ready_gap(o):
        g = -1
        for p, l in o.preds:
            if p.kind == 'mfma':
                g = max(g, p.bb + max(l, 1) - 1)
            else:
                if p not in placed:
                    return None
                g = max(g, p.gap + l)
        return g

    def must_before(o, g):
        return o.hard <= g

    hard = {}
    for o in reversed(ops):
        if o.kind == 'mfma':
            hard[o] = o.bb - 1
            continue
        h = BIG
        for s, l in o.succs:
            h = min(h, hard[s])
        hard[o] = h

    for g in range(-1, n):
        cap = 8 if g >= 0 else 10 ** 9
        if g == n - 1:
            cap = 10 ** 9
        used = 0
        nsal = 0
        cur = gaps[g]
        has_vm = False
        nds = 0
        has_valu = False
        while True:
            cands = []
            for o in remaining:
                rg = ready_gap(o)
                forced = hard[o] <= g
                if rg is None:
                    continue
                if forced:
                    cands.append((-1, o.latest, o.idx, o))
                    continue
                if rg > g and g < n - 1:
                    continue
                if o.early is not None and g < o.early:
                    continue
                if g == -1 and o.latest > -1:
                    continue
                if g < n - 1 and o.win is not None and o.latest < BIG // 2 and g < o.latest - o.win:
                    continue
                c = COST[o.kind]
                late = o.latest <= g
                if o.kind == 'salu':
                    if (nsal >= 1 or has_vm) and not late and cap < 10 ** 9:
                        continue
                else:
                    if used + c > cap and not late:
                        continue
                    if o.kind in VM_KINDS and (used > 0 or nsal > 0) and not late and cap < 10 ** 9:
                        continue
                    if o.kind in DS_KINDS + ('bar',) and has_valu and not late and cap < 10 ** 9:
                        continue
                    if o.kind in DS_KINDS and nds >= 1 and not late and cap < 10 ** 9 and o.win is not None \
                            and o.latest - g > o.win - TT_LAG:
                        continue
                cands.append((0, o.latest - o.prio, o.idx, o))
            if not cands:
                break
            cands.sort(key=lambda t: t[:3])
            o = cands[0][3]
            o.gap = g
            placed.add(o)
            remaining.remove(o)
            cur.append(o)
            if o.kind == 'salu':
                nsal += 1
                if nsal > 1:
                    used += 4
            else:
                used += COST[o.kind]
            if o.kind in DS_KINDS:
                nds += 1
            if o.kind in VM_KINDS:
                has_vm = True
            if o.kind in VALU_KINDS:
                has_valu = True
        if 0 <= g < n - 1 and used > 8:
            over += used - 8
    assert not remaining, [o.text for o in remaining[:5]]
    out = []

    def order_gap(lst):
        res = []
        todo = list(lst)
        rank = lambda o: 0 if o.kind == 'salu' else (1 if o.kind in DS_KINDS + VM_KINDS + ('bar',) else 2)
        while todo:
            best = None
            for o in todo:
                if any(p in todo for p, _ in o.preds):
                    continue
                if best is None or (rank(o), lst.index(o)) < (rank(best), lst.index(best)):
                    best = o
            res.append(best)
            todo.remove(best)
        return res

    out += gaps[-1]
    for g in range(n):
        out.append(bb[g])
        out += order_gap(gaps[g]) if g < n - 1 else gaps[g]
    check_order(ops, out)
    if verbose:
        print(f'; sched {name}: {n} mfma, {len(fill)} fillers, overflow {over} clks, pre {len(gaps[-1])}, post {len(gaps[n-1])}')
    return out


def check_order(ops, out):
    pos = {o: i for i, o in enumerate(out)}
    assert len(pos) == len(ops)
    for o in ops:
        for p, _ in o.preds:
            assert pos[p] < pos[o], (p.text, o.text)


def W(vm=None, lgkm=None):
    t = 's_waitcnt'
    if vm is not None:
        t += f' vmcnt({vm})'
    if lgkm is not None:
        t += f' lgkmcnt({lgkm})'
    return Op(t, 'wait')


def insert_waits(ops, vmq=None, dsq=None, age=16):
    vmq = list(vmq or [])
    dsq = list(dsq or [])
    out = []
    i = 0
    n = len(ops)
    issue_pos = {}

    def need(o, q):
        regs = (set(o.uses) | set(r for r in o.defs if is_real(r))) - {'VMORD:', 'SORD:', 'BARORD:'}
        k = -1
        for j, p in enumerate(q):
            if regs & set(p.defs):
                k = j
        if 'ALLVM' in o.uses and q is vmq:
            k = len(q) - 1
        if 'ALLDS' in o.uses and q is dsq:
            k = len(q) - 1
        return k

    def emit_wait(kv, kd):
        nonlocal vmq, dsq
        vm = lg = None
        if kv >= 0:
            vm = len(vmq) - 1 - kv
            vmq[:] = vmq[kv + 1:]
        if kd >= 0:
            while kd + 1 < len(dsq) and len(out) - issue_pos.get(dsq[kd + 1], -10 ** 9) >= age:
                kd += 1
            lg = len(dsq) - 1 - kd
            if lg > 15:
                kd = len(dsq) - 1 - 15
                lg = 15
            dsq[:] = dsq[kd + 1:]
        if vm is not None or lg is not None:
            out.append(W(vm, lg))

    while i < n:
        o = ops[i]
        kv, kd = need(o, vmq), need(o, dsq)
        if o.kind in VM_KINDS and len(vmq) - (kv + 1) >= 63:
            kv = len(vmq) - 63
        emit_wait(kv, kd)
        out.append(o)
        issue_pos[o] = len(out)
        if o.kind in VM_KINDS:
            vmq.append(o)
        if o.kind in DS_KINDS:
            dsq.append(o)
        if o.kind == 'wait':
            m = re.search(r'vmcnt\((\d+)\)', o.text)
            if m:
                c = int(m.group(1))
                vmq[:] = vmq[max(0, len(vmq) - c):] if c else []
            m = re.search(r'lgkmcnt\((\d+)\)', o.text)
            if m:
                c = int(m.group(1))
                dsq[:] = dsq[max(0, len(dsq) - c):] if c else []
        if o.kind == 'mfma':
            j = i + 1
            kd = -1
            while j < n:
                p = ops[j]
                kd = max(kd, need(p, dsq))
                if p.kind == 'mfma':
                    break
                j += 1
            first_vm = i + 1 < n and ops[i + 1].kind in VM_KINDS
            if kd >= 0 and j - i <= 4:
                emit_wait(-1, kd)
        i += 1
    return out, vmq, dsq


def states(o):
    if o.kind == 'label':
        return 0
    if o.kind == 'nop':
        return int(o.text.split()[1]) + 1
    return 1


def hazard_need(p, s):
    pd = set(r for r in p.defs if is_real(r))
    su = set(r for r in s.uses if is_real(r))
    sd = set(r for r in s.defs if is_real(r))
    need = 0
    if p.kind == 'mfma':
        if s.kind == 'mfma':
            ab = su - set(s.cuses)
            if pd & ab:
                need = max(need, 8)
            if pd & set(s.cuses) and pd != set(s.cuses):
                need = max(need, 6)
            if (pd & sd) and not (pd & set(s.cuses)):
                need = max(need, 6)
        else:
            if pd & (su | sd):
                need = max(need, 8)
            if s.kind in VALU_KINDS and set(p.cuses) & sd:
                need = max(need, 3)
    if p.kind in VALU_KINDS:
        vd = set(r for r in pd if r[0] in 'va' and r != 'vcc')
        sg = pd - vd
        if s.kind == 'mfma' and vd & su:
            need = max(need, 2)
        if s.kind == 'perm' and vd & (su | sd):
            need = max(need, 2)
        if p.kind == 'trans' and s.kind in VALU_KINDS and vd & su:
            need = max(need, 1)
        if 'readfirstlane' in s.text or 'readlane' in s.text:
            if vd & su:
                need = max(need, 1)
        if 'dpp' in s.text or 'row_' in s.text:
            if vd & su:
                need = max(need, 2)
        if sg & su:
            if s.kind in VM_KINDS:
                need = max(need, 5)
            elif s.kind in VALU_KINDS:
                need = max(need, 2)
            else:
                need = max(need, 4)
    if p.kind == 'salu' and 'm0' in pd and s.kind == 'dma':
        need = max(need, 1)
    if p.kind == 'vms':
        pu = set(r for r in p.uses if is_real(r) and r[0] in 'va')
        if pu & sd and s.kind not in ('salu', 'bar', 'wait'):
            need = max(need, 2)
    if p.kind == 'salu' and 'exec' in pd and s.kind == 'perm':
        need = max(need, 0)
    return need


def pad_hazards(ops):
    out = []
    added = 0
    for s in ops:
        req = 0
        dist = 0
        for p in reversed(out):
            if dist >= 8:
                break
            nd = hazard_need(p, s)
            if nd > dist:
                req = max(req, nd - dist)
            dist += states(p)
        if req:
            out.append(Op(f's_nop {req - 1}', 'nop'))
            added += req
        out.append(s)
    return out, added


def estimate(ops):
    t = 0
    mf_free = 0
    prev = None
    for o in ops:
        if o.kind == 'mfma':
            t = max(t, mf_free)
            mf_free = t + 16
            t += 8
        elif o.kind in ('salu', 'wait', 'nop', 'bar'):
            c = 4 * states(o)
            if prev is not None and prev.kind == 'mfma':
                c -= 4
            t += c
        elif o.kind in VM_KINDS:
            t += 8 if (prev is not None and prev.kind == 'mfma') else 12
        elif o.kind == 'trans':
            t += 8
        elif o.kind in DS_KINDS:
            t += 4 + (8 if prev is not None and prev.kind in VALU_KINDS else 0)
        else:
            t += 4
        prev = o
    return max(t, mf_free)
```

```python
import sys, os, struct, math
from sched import *
import sched

KNAME = 'standalone__mha_block_cached__near_ridge_kernel'
E = os.environ.get
KVF = {'0': '', 'nt': ' nt'}[E('KVF', 'nt')]
XF = {'0': '', 'nt': ' nt', 'sc1': ' sc1'}[E('XF', '0')]
WQF = {'0': '', 'nt': ' nt', 'sc1': ' sc1'}[E('WQF', '0')]
WOF = {'0': '', 'nt': ' nt'}[E('WOF', 'nt')]
STF = {'0': '', 'sc1': ' sc1'}[E('STF', 'sc1')]
FT = int(E('FT', 0))
STAMP = int(E('STAMP', 0))
ROT = int(E('ROT', -1))
NPREX = int(E('NPREX', 6))
NPREW = int(E('NPREW', 2))
WOREL = int(E('WOREL', 5))
XREL = int(E('XREL', 7))
WQPF = int(E('WQPF', 1))
CODEPF = int(E('CODEPF', 2))
XLIN = int(E('XLIN', 0))
SH = 0 if int(E('NOSHIFT', 0)) else 8
NOX = int(E('NOX', 0))

WOFF = 0x100000
OOFF = 0x600000
FOFF = 0x80000
NPF = int(E('NPF', 12))
NLD = int(E('NLD', 7))
SPIN = 200000
SCALE = struct.unpack('<I', struct.pack('<f', math.log2(math.e) / math.sqrt(128.0)))[0]


def v(i, n=1): return rng('v', i, n)
def a(i, n=1): return rng('a', i, n)
def s(i, n=1): return rng('s', i, n)


class Prog:
    def __init__(self):
        self.ops = []

    def add(self, op):
        self.ops.append(op)
        return op

    def salu(self, text, defs=(), uses=(), **k):
        d = list(defs) + ['SORD:']
        if not text.startswith(('s_mov', 's_mul', 's_load', 's_getpc', 's_cselect')):
            d.append('scc')
        return self.add(Op(text, 'salu', d, uses, **k))

    def valu(self, text, defs=(), uses=(), kind='valu', **k):
        return self.add(Op(text, kind, defs, uses, **k))

    def mfma(self, d, A, B, c):
        dr = R(d[0], d[1], 4)
        cr = R(c[0], c[1], 4) if c else []
        ct = rng(c[0], c[1], 4) if c else '0'
        t = f'v_mfma_f32_16x16x32_bf16 {rng(d[0], d[1], 4)}, {rng(A[0], A[1], 4)}, {rng(B[0], B[1], 4)}, {ct}'
        return self.add(Op(t, 'mfma', dr, R(A[0], A[1], 4) + R(B[0], B[1], 4) + cr, cr))

    def raw(self, text, kind='other', defs=(), uses=(), **k):
        return self.add(Op(text, kind, defs, uses, **k))


V_L16 = 1
V_KD, V_VD = 2, 3
V_KA = 4
V_VA = 8
V_O = 16
V_Q = 112
V_S = 160
V_P = 208
V_NM = 232
V_T = 244
V_WA = V_P
V_XO = V_P + 4
V_XA = V_P + 6
V_WD = V_P + 8
V_OD = V_P + 12
V_OA = V_P + 16
A_X = 0
A_WR = 192; NWR = 12
A_WO = 240
A_KR = 0; NKR = 6
A_VR = 24; NVR = 6
A_L = 48
A_ONE = 60

S_X, S_WQ, S_K, S_V, S_WO, S_OD, S_WD = 8, 12, 16, 20, 24, 28, 32
S_XO, S_WQO = 40, 48
S_M0W, S_M0K, S_KVO, S_SC, S_4K, S_8K = 36, 37, 38, 39, 56, 57
S_M0X, S_XS = 61, 62
NXG = 6
WQE = NXG * 8192
WQO = WQE + 24576 + 8
S_B, S_H, S_ROT, S_W = 4, 5, 6, 3
S_FL, S_DB = 64, 68
S_WS, S_OS, S_OUT = 8, 12, 24
S_OSO, S_WSO, S_OUTO = 59, 60, 63
S_P0, S_P1 = 40, 41
V_WV = 250
V_FW, V_FP = 254, 255
BADA = 0


def srd(p, base, lo_src, off, nrec):
    if off is None:
        p.salu(f's_mov_b32 s{base}, s{lo_src}', [f's{base}'], [f's{lo_src}'])
        p.salu(f's_mov_b32 s{base+1}, s{lo_src+1}', [f's{base+1}'], [f's{lo_src+1}'])
    else:
        p.salu(f's_add_u32 s{base}, s{lo_src}, {off}', [f's{base}'], [f's{lo_src}', off])
        p.salu(f's_addc_u32 s{base+1}, s{lo_src+1}, 0', [f's{base+1}'], [f's{lo_src+1}', 'scc'])
    if isinstance(nrec, int):
        p.salu(f's_mov_b32 s{base+2}, {nrec}', [f's{base+2}'])
    else:
        p.salu(f's_sub_u32 s{base+2}, {nrec[0]}, {nrec[1]}', [f's{base+2}'], [nrec[1]])
    p.salu(f's_mov_b32 s{base+3}, 0x20000', [f's{base+3}'])


STG = [int(x) for x in E('STG', '0,96,240,372,624,1032,1190').split(',')]
NSTAMP = len(STG) + 5


def stamp(p, i, early=None):
    if STAMP:
        p.raw(f's_mem{"real" if STAMP == 1 else ""}time s[{80+2*i}:{81+2*i}]', 'salu', [f's{80+2*i}', f's{81+2*i}'], [],
              prio=10**6, early=early)


def k1_prologue(p):
    T = V_T
    p.raw('s_load_dwordx8 s[64:71], s[0:1], 0', 'salu', R('s', 64, 8))
    p.raw('s_load_dwordx8 s[72:79], s[0:1], 32', 'salu', R('s', 72, 8))
    V = p.valu
    if CODEPF:
        p.raw('s_getpc_b64 s[28:29]', 'salu', ['s28', 's29'])
        p.raw('L_pc:', 'label')
        p.salu('s_mov_b32 s30, L_codeend - L_pc', ['s30'])
        p.salu('s_mov_b32 s31, 0x20000', ['s31'])
        V(f'v_lshlrev_b32 v{T+4}, 7, v0', [f'v{T+4}'], ['v0'])
        for i in range(CODEPF):
            if i:
                V(f'v_add_u32 v{T+4}, 32768, v{T+4}', [f'v{T+4}'], [f'v{T+4}'])
            p.raw(f'buffer_load_dword v{V_S+1+i}, v{T+4}, s[28:31], 0 offen', 'vml', [f'v{V_S+1+i}', 'VMORD:'], [f'v{T+4}'] + R('s', 28, 4))
    V(f'v_lshrrev_b32 v{T}, 6, v0', [f'v{T}'], ['v0'])
    V(f'v_and_b32 v{T+1}, 63, v0', [f'v{T+1}'], ['v0'])
    V(f'v_readfirstlane_b32 s{S_W}, v{T}', [f's{S_W}'], [f'v{T}'])
    V(f'v_lshrrev_b32 v{T+2}, 4, v{T+1}', [f'v{T+2}'], [f'v{T+1}'])
    V(f'v_and_b32 v{T+3}, 15, v0', [f'v{T+3}'], ['v0'])
    V(f'v_lshlrev_b32 v{V_L16}, 4, v{T+1}', [f'v{V_L16}'], [f'v{T+1}'])
    p.salu('s_and_b32 s7, s2, 7', ['s7'], ['s2'])
    p.salu(f's_lshl_b32 s{S_H}, s7, 2', [f's{S_H}'], ['s7'])
    p.salu('s_bfe_u32 s58, s2, 0x20003', ['s58'], ['s2'])
    p.salu(f's_add_u32 s{S_H}, s{S_H}, s58', [f's{S_H}'], [f's{S_H}', 's58'])
    p.salu(f's_lshr_b32 s{S_B}, s2, 5', [f's{S_B}'], ['s2'])
    if ROT:
        p.salu(f's_lshl_b32 s58, s58, 1', ['s58'], ['s58'])
        p.salu(f's_add_u32 s{S_ROT}, s58, s{S_B}', [f's{S_ROT}'], ['s58', f's{S_B}'])
    else:
        p.salu(f's_mov_b32 s{S_ROT}, 0', [f's{S_ROT}'])
    if ROT == -1:
        p.salu(f's_and_b32 s{S_ROT}, s2, 7', [f's{S_ROT}'], ['s2'])
    if ROT >= 2:
        p.salu(f's_lshr_b32 s58, s58, 1', ['s58'], ['s58'])
        p.salu(f's_xor_b32 s{S_ROT}, s58, s{S_B}', [f's{S_ROT}'], ['s58', f's{S_B}'])
        p.salu(f's_and_b32 s{S_ROT}, s{S_ROT}, {ROT-1}', [f's{S_ROT}'], [f's{S_ROT}'])
    for i in range(8):
        if ROT >= 2:
            p.salu(f's_xor_b32 s{S_XO+i}, s{S_ROT}, {i}', [f's{S_XO+i}'], [f's{S_ROT}'])
        else:
            p.salu(f's_add_u32 s{S_XO+i}, s{S_ROT}, {i}', [f's{S_XO+i}'], [f's{S_ROT}'])
            p.salu(f's_and_b32 s{S_XO+i}, s{S_XO+i}, 7', [f's{S_XO+i}'], [f's{S_XO+i}'])
        p.salu(f's_lshl_b32 s{S_WQO+i}, s{S_XO+i}, 19', [f's{S_WQO+i}'], [f's{S_XO+i}'])
        p.salu(f's_lshl_b32 s{S_XO+i}, s{S_XO+i}, 7', [f's{S_XO+i}'], [f's{S_XO+i}'])
    p.salu(f's_lshl_b32 s{S_M0W}, s{S_W}, 11', [f's{S_M0W}'], [f's{S_W}'])
    p.salu(f's_lshl_b32 s{S_M0K}, s{S_W}, 12', [f's{S_M0K}'], [f's{S_W}'])
    p.salu(f's_mul_i32 s{S_M0X}, s{S_W}, {NXG*2048}', [f's{S_M0X}'], [f's{S_W}'])
    p.salu(f's_lshl_b32 s7, s{S_W}, 17', ['s7'], [f's{S_W}'])
    V(f'v_lshlrev_b32 v{T+4}, 2, v{T+2}', [f'v{T+4}'], [f'v{T+2}'])
    V(f'v_xor_b32 v{T+4}, v{T+4}, v{T+3}', [f'v{T+4}'], [f'v{T+4}', f'v{T+3}'])
    V(f'v_lshlrev_b32 v{T+4}, 4, v{T+4}', [f'v{T+4}'], [f'v{T+4}'])
    V(f'v_lshl_add_u32 v{T+4}, v{T+2}, 13, v{T+4}', [f'v{T+4}'], [f'v{T+4}', f'v{T+2}'])
    V(f'v_add_u32 v{V_WD}, s7, v{T+4}', [f'v{V_WD}'], [f'v{T+4}', 's7'])
    for j in range(1, 4):
        V(f'v_add_u32 v{V_WD+j}, {j*32768 - (j&1)*1024}, v{V_WD}', [f'v{V_WD+j}'], [f'v{V_WD}'])
    p.salu(f's_mul_i32 s58, s{S_W}, 49152', ['s58'], [f's{S_W}'])
    V(f'v_and_b32 v{T+5}, 7, v0', [f'v{T+5}'], ['v0'])
    V(f'v_xor_b32 v{T+5}, v{T+5}, v{T+2}', [f'v{T+5}'], [f'v{T+5}', f'v{T+2}'])
    V(f'v_lshlrev_b32 v{T+5}, 4, v{T+5}', [f'v{T+5}'], [f'v{T+5}'])
    V(f'v_bfe_u32 v{T+6}, v0, 3, 3', [f'v{T+6}'], ['v0'])
    V(f'v_lshl_add_u32 v{T+5}, v{T+6}, 10, v{T+5}', [f'v{T+5}'], [f'v{T+5}', f'v{T+6}'])
    V(f'v_add_u32 v{V_XO}, s58, v{T+5}', [f'v{V_XO}'], [f'v{T+5}', 's58'])
    V(f'v_xor_b32 v{V_XO+1}, 64, v{V_XO}', [f'v{V_XO+1}'], [f'v{V_XO}'])
    V(f'v_add_u32 v{V_XO+1}, 7168, v{V_XO+1}', [f'v{V_XO+1}'], [f'v{V_XO+1}'])
    p.raw('s_waitcnt lgkmcnt(0)', 'wait', [], R('s', 64, 16))
    p.salu(f's_lshl_b32 s7, s{S_H}, 8', ['s7'], [f's{S_H}'])
    srd(p, S_WQ, 70, 's7', ('0x400000', 's7'))
    p.salu(f's_mul_i32 s7, s{S_B}, 196608', ['s7'], [f's{S_B}'])
    srd(p, S_X, 64, 's7', 196608)


def k1_prologue2(p):
    T = V_T
    V = p.valu
    p.salu(f's_lshl_b32 s7, s{S_B}, 5', ['s7'], [f's{S_B}'])
    p.salu(f's_add_u32 s7, s7, s{S_H}', ['s7'], ['s7', f's{S_H}'])
    p.salu('s_lshl_b32 s7, s7, 17', ['s7'], ['s7'])
    srd(p, S_K, 66, 's7', 131072)
    srd(p, S_V, 68, 's7', 131072)
    p.salu(f's_lshl_b32 s58, s{S_W}, 2', ['s58'], [f's{S_W}'])
    V(f'v_add_u32 v{T+4}, s58, v{T+2}', [f'v{T+4}'], [f'v{T+2}', 's58'])
    V(f'v_xor_b32 v{T+4}, v{T+4}, v{T+3}', [f'v{T+4}'], [f'v{T+4}', f'v{T+3}'])
    V(f'v_lshlrev_b32 v{T+5}, 8, v{T+2}', [f'v{T+5}'], [f'v{T+2}'])
    V(f'v_add_u32 v{T+5}, s{S_M0K}, v{T+5}', [f'v{T+5}'], [f'v{T+5}', f's{S_M0K}'])
    V(f'v_lshl_add_u32 v{V_KD}, v{T+4}, 4, v{T+5}', [f'v{V_KD}'], [f'v{T+4}', f'v{T+5}'])
    p.salu(f's_and_b32 s58, s{S_W}, 1', ['s58'], [f's{S_W}'])
    p.salu('s_lshl_b32 s58, s58, 2', ['s58'], ['s58'])
    V(f'v_add_u32 v{T+4}, s58, v{T+2}', [f'v{T+4}'], [f'v{T+2}', 's58'])
    V(f'v_lshlrev_b32 v{T+4}, 1, v{T+4}', [f'v{T+4}'], [f'v{T+4}'])
    V(f'v_xor_b32 v{T+4}, v{T+4}, v{T+3}', [f'v{T+4}'], [f'v{T+4}', f'v{T+3}'])
    V(f'v_lshl_add_u32 v{V_VD}, v{T+4}, 4, v{T+5}', [f'v{V_VD}'], [f'v{T+4}', f'v{T+5}'])
    V(f'v_bfe_u32 v{T+6}, v0, 2, 2', [f'v{T+6}'], ['v0'])
    V(f'v_and_b32 v{T+7}, 3, v0', [f'v{T+7}'], ['v0'])
    V(f'v_and_b32 v{T+8}, 1, v{T+2}', [f'v{T+8}'], [f'v{T+2}'])
    V(f'v_lshrrev_b32 v{T+4}, 1, v{T+3}', [f'v{T+4}'], [f'v{T+3}'])
    V(f'v_xor_b32 v{T+4}, v{T+4}, v{T+2}', [f'v{T+4}'], [f'v{T+4}', f'v{T+2}'])
    V(f'v_lshlrev_b32 v{T+4}, 4, v{T+4}', [f'v{T+4}'], [f'v{T+4}'])
    V(f'v_lshl_add_u32 v{T+4}, v{T+3}, 7, v{T+4}', [f'v{T+4}'], [f'v{T+4}', f'v{T+3}'])
    V(f'v_add_u32 v{V_XA}, s{S_M0X}, v{T+4}', [f'v{V_XA}'], [f'v{T+4}', f's{S_M0X}'])
    V(f'v_xor_b32 v{V_XA+1}, 64, v{V_XA}', [f'v{V_XA+1}'], [f'v{V_XA}'])
    V(f'v_lshrrev_b32 v{T+4}, 1, v{T+2}', [f'v{T+4}'], [f'v{T+2}'])
    V(f'v_lshlrev_b32 v{T+4}, 11, v{T+4}', [f'v{T+4}'], [f'v{T+4}'])
    V(f'v_mul_u32_u24 v{T+5}, {WQO-WQE}, v{T+8}', [f'v{T+5}'], [f'v{T+8}'])
    V(f'v_add_u32 v{T+4}, v{T+4}, v{T+5}', [f'v{T+4}'], [f'v{T+4}', f'v{T+5}'])
    V(f'v_add_u32 v{T+4}, {WQE}, v{T+4}', [f'v{T+4}'], [f'v{T+4}'])
    V(f'v_lshl_add_u32 v{T+4}, v{T+6}, 8, v{T+4}', [f'v{T+4}'], [f'v{T+4}', f'v{T+6}'])
    V(f'v_lshl_add_u32 v{T+4}, v{T+7}, 4, v{T+4}', [f'v{T+4}'], [f'v{T+4}', f'v{T+7}'])
    for ks in range(4):
        V(f'v_xor_b32 v{T+5}, {ks}, v{T+6}', [f'v{T+5}'], [f'v{T+6}'])
        V(f'v_lshl_add_u32 v{V_WA+ks}, v{T+5}, 6, v{T+4}', [f'v{V_WA+ks}'], [f'v{T+5}', f'v{T+4}'])


def k1_prologue3(p, kslot0, vslot0):
    T = V_T
    V = p.valu
    V(f'v_lshlrev_b32 v{T+4}, 8, v{T+7}', [f'v{T+4}'], [f'v{T+7}'])
    V(f'v_lshl_add_u32 v{T+4}, v{T+6}, 12, v{T+4}', [f'v{T+4}'], [f'v{T+4}', f'v{T+6}'])
    V(f'v_add_u32 v{T+4}, {kslot0*16384}, v{T+4}', [f'v{T+4}'], [f'v{T+4}'])
    for ks in range(4):
        V(f'v_add_u32 v{T+5}, {4*ks}, v{T+2}', [f'v{T+5}'], [f'v{T+2}'])
        V(f'v_xor_b32 v{T+5}, v{T+5}, v{T+3}', [f'v{T+5}'], [f'v{T+5}', f'v{T+3}'])
        V(f'v_lshl_add_u32 v{V_KA+ks}, v{T+5}, 4, v{T+4}', [f'v{V_KA+ks}'], [f'v{T+5}', f'v{T+4}'])
    V(f'v_lshlrev_b32 v{T+4}, 12, v{T+2}', [f'v{T+4}'], [f'v{T+2}'])
    V(f'v_lshl_add_u32 v{T+4}, v{T+6}, 8, v{T+4}', [f'v{T+4}'], [f'v{T+4}', f'v{T+6}'])
    V(f'v_and_b32 v{T+5}, 1, v0', [f'v{T+5}'], ['v0'])
    V(f'v_lshl_add_u32 v{T+4}, v{T+5}, 3, v{T+4}', [f'v{T+4}'], [f'v{T+4}', f'v{T+5}'])
    V(f'v_add_u32 v{T+4}, {vslot0*16384}, v{T+4}', [f'v{T+4}'], [f'v{T+4}'])
    V(f'v_lshl_add_u32 v{T+9}, v{T+8}, 2, v{T+6}', [f'v{T+9}'], [f'v{T+8}', f'v{T+6}'])
    V(f'v_lshlrev_b32 v{T+9}, 1, v{T+9}', [f'v{T+9}'], [f'v{T+9}'])
    V(f'v_bfe_u32 v{T+10}, v0, 1, 1', [f'v{T+10}'], ['v0'])
    V(f'v_or_b32 v{T+9}, v{T+9}, v{T+10}', [f'v{T+9}'], [f'v{T+9}', f'v{T+10}'])
    for dt in range(8):
        V(f'v_xor_b32 v{T+5}, {2*dt}, v{T+9}', [f'v{T+5}'], [f'v{T+9}'])
        V(f'v_lshl_add_u32 v{V_VA+dt}, v{T+5}, 4, v{T+4}', [f'v{V_VA+dt}'], [f'v{T+5}', f'v{T+4}'])
    V(f'v_bfe_u32 v{T+4}, v0, 3, 3', [f'v{T+4}'], ['v0'])
    V(f'v_and_b32 v{T+5}, 7, v0', [f'v{T+5}'], ['v0'])
    V(f'v_lshlrev_b32 v{T+11}, 1, v{T+2}', [f'v{T+11}'], [f'v{T+2}'])
    V(f'v_xor_b32 v{T+5}, v{T+5}, v{T+11}', [f'v{T+5}'], [f'v{T+5}', f'v{T+11}'])
    V(f'v_lshlrev_b32 v{T+5}, 4, v{T+5}', [f'v{T+5}'], [f'v{T+5}'])
    V(f'v_lshl_add_u32 v{V_OD}, v{T+4}, 10, v{T+5}', [f'v{V_OD}'], [f'v{T+4}', f'v{T+5}'])
    for j in range(1, 4):
        V(f'v_add_u32 v{V_OD+j}, {j*7168}, v{V_OD}', [f'v{V_OD+j}'], [f'v{V_OD}'])
    V(f'v_lshl_add_u32 v{T+4}, v{T+2}, 2, v{T+6}', [f'v{T+4}'], [f'v{T+2}', f'v{T+6}'])
    V(f'v_and_b32 v{T+5}, 6, v{T+4}', [f'v{T+5}'], [f'v{T+4}'])
    V(f'v_or_b32 v{T+5}, v{T+5}, v{T+10}', [f'v{T+5}'], [f'v{T+5}', f'v{T+10}'])
    V(f'v_lshlrev_b32 v{T+4}, 7, v{T+4}', [f'v{T+4}'], [f'v{T+4}'])
    V(f'v_and_b32 v{T+11}, 1, v0', [f'v{T+11}'], ['v0'])
    V(f'v_lshl_add_u32 v{T+4}, v{T+11}, 3, v{T+4}', [f'v{T+4}'], [f'v{T+4}', f'v{T+11}'])
    V(f'v_add_u32 v{T+4}, s{S_M0K}, v{T+4}', [f'v{T+4}'], [f'v{T+4}', f's{S_M0K}'])
    V(f'v_add_u32 v{T+4}, {WOSLOT*16384}, v{T+4}', [f'v{T+4}'], [f'v{T+4}'])
    for n4 in range(4):
        V(f'v_xor_b32 v{T+11}, {2*n4}, v{T+5}', [f'v{T+11}'], [f'v{T+5}'])
        V(f'v_lshl_add_u32 v{V_OA+n4}, v{T+11}, 4, v{T+4}', [f'v{V_OA+n4}'], [f'v{T+11}', f'v{T+4}'])
    p.salu('s_lshr_b32 s58, s2, 3', ['s58'], ['s2'])
    p.salu('s_lshl_b32 s58, s58, 2', ['s58'], ['s58'])
    p.salu(f's_add_u32 s58, s58, s{S_W}', ['s58'], ['s58', f's{S_W}'])
    p.salu('s_and_b32 s59, s2, 7', ['s59'], ['s2'])
    p.salu('s_lshl_b32 s7, s58, 15', ['s7'], ['s58'])
    p.salu('s_lshl_b32 s60, s59, 7', ['s60'], ['s59'])
    p.salu('s_add_u32 s7, s7, s60', ['s7'], ['s7', 's60'])
    srd(p, S_WO, 72, 's7', ('0x400000', 's7'))
    p.salu('s_add_u32 s7, s60, s58', ['s7'], ['s60', 's58'])
    p.salu('s_lshl_b32 s7, s7, 12', ['s7'], ['s7'])
    p.salu(f's_add_u32 s7, s7, {WOFF}', ['s7'], ['s7'])
    srd(p, S_WD, 78, 's7', 4096)
    p.salu(f's_lshl_b32 s7, s{S_B}, 2', ['s7'], [f's{S_B}'])
    p.salu(f's_add_u32 s7, s7, s{S_W}', ['s7'], ['s7', f's{S_W}'])
    p.salu('s_lshl_b32 s7, s7, 5', ['s7'], ['s7'])
    p.salu(f's_add_u32 s7, s7, s{S_H}', ['s7'], ['s7', f's{S_H}'])
    p.salu('s_mul_i32 s7, s7, 12288', ['s7'], ['s7'])
    p.salu(f's_add_u32 s7, s7, {OOFF}', ['s7'], ['s7'])
    srd(p, S_OD, 78, 's7', 12288)
    p.salu(f's_lshl_b32 s7, s{S_B}, 2', ['s7'], [f's{S_B}'])
    p.salu(f's_add_u32 s7, s7, s{S_W}', ['s7'], ['s7', f's{S_W}'])
    p.salu('s_lshl_b32 s7, s7, 5', ['s7'], ['s7'])
    p.salu(f's_add_u32 s7, s7, s{S_H}', ['s7'], ['s7', f's{S_H}'])
    p.salu('s_lshl_b32 s7, s7, 7', ['s7'], ['s7'])
    V(f'v_lshl_add_u32 v{V_FW}, v{T+1}, 20, s7', [f'v{V_FW}'], [f'v{T+1}', 's7'])
    p.salu(f's_mov_b32 s7, {FOFF}', ['s7'])
    srd(p, S_FL, 78, 's7', 131072)
    srd(p, S_DB, 76, None, 256)
    p.salu('s_and_b32 s58, s2, 6', ['s58'], ['s2'])
    p.salu('s_bfe_u32 s7, s2, 0x10003', ['s7'], ['s2'])
    p.salu('s_add_u32 s58, s58, s7', ['s58'], ['s58', 's7'])
    p.salu('s_lshl_b32 s58, s58, 2', ['s58'], ['s58'])
    p.salu('s_bfe_u32 s7, s2, 0x20004', ['s7'], ['s2'])
    p.salu('s_add_u32 s58, s58, s7', ['s58'], ['s58', 's7'])
    p.salu(f's_mul_i32 s{S_OUTO}, s58, 49152', [f's{S_OUTO}'], ['s58'])
    p.salu('s_lshl_b32 s58, s58, 2', ['s58'], ['s58'])
    p.salu(f's_add_u32 s58, s58, s{S_W}', ['s58'], ['s58', f's{S_W}'])
    p.salu(f's_mul_i32 s{S_OSO}, s58, 98304', [f's{S_OSO}'], ['s58'])
    p.salu(f's_add_u32 s{S_OSO}, s{S_OSO}, {OOFF}', [f's{S_OSO}'], [f's{S_OSO}'])
    p.salu('s_lshl_b32 s58, s58, 10', ['s58'], ['s58'])
    V(f'v_lshrrev_b32 v{T+4}, 3, v{T+1}', [f'v{T+4}'], [f'v{T+1}'])
    V(f'v_lshl_add_u32 v{T+4}, v{T+4}, 20, s58', [f'v{T+4}'], [f'v{T+4}', 's58'])
    V(f'v_lshl_add_u32 v{V_FP}, v{T+1}, 7, v{T+4}', [f'v{V_FP}'], [f'v{T+1}', f'v{T+4}'])
    p.salu('s_and_b32 s58, s2, 1', ['s58'], ['s2'])
    p.salu('s_lshl_b32 s58, s58, 2', ['s58'], ['s58'])
    p.salu('s_lshr_b32 s7, s2, 6', ['s7'], ['s2'])
    p.salu('s_add_u32 s58, s58, s7', ['s58'], ['s58', 's7'])
    p.salu('s_lshl_b32 s58, s58, 2', ['s58'], ['s58'])
    p.salu(f's_add_u32 s58, s58, s{S_W}', ['s58'], ['s58', f's{S_W}'])
    p.salu(f's_lshl_b32 s{S_WSO}, s58, 17', [f's{S_WSO}'], ['s58'])
    p.salu(f's_add_u32 s{S_WSO}, s{S_WSO}, {WOFF}', [f's{S_WSO}'], [f's{S_WSO}'])
    p.salu('s_lshl_b32 s58, s58, 5', ['s58'], ['s58'])
    p.salu(f's_add_u32 s{S_OUTO}, s{S_OUTO}, s58', [f's{S_OUTO}'], [f's{S_OUTO}', 's58'])
    for n in range(4):
        p.salu(f's_add_u32 s7, s{S_W}, {n}', ['s7'], [f's{S_W}'])
        p.salu('s_and_b32 s7, s7, 3', ['s7'], ['s7'])
        p.salu('s_lshl_b32 s7, s7, 10', ['s7'], ['s7'])
        V(f'v_add_u32 v{V_WV+n}, s7, v{V_L16}', [f'v{V_WV+n}'], ['s7', f'v{V_L16}'])
    V(f'v_mov_b32 v{T+4}, 0', [f'v{T+4}'])
    p.raw(f'buffer_store_dword v{T+4}, v{V_FW}, {s(S_FL,4)}, 0 offen sc1', 'vms', ['VMORD:'], [f'v{T+4}', f'v{V_FW}'] + R('s', S_FL, 4))
    p.salu(f's_mov_b32 s{S_SC}, {SCALE:#x}', [f's{S_SC}'])
    p.salu(f's_mov_b32 s{S_4K}, 4096', [f's{S_4K}'])
    p.salu(f's_mov_b32 s{S_8K}, 8192', [f's{S_8K}'])


HP = 10 ** 5


def dma_wq(p, pos, half, free=None, early=None):
    u = [free] if free else []
    k = dict(prio=HP, early=None if early is None else early - 1)
    p.salu(f's_add_u32 m0, s{S_M0W}, {(WQO if half else WQE) + (pos % 3) * 8192}', ['m0'], [f's{S_M0W}'] + u, **k)
    for j in range(2):
        p.raw(f'buffer_load_dwordx4 v{V_WD+2*half+j}, {s(S_WQ,4)}, s{S_WQO+pos} offen offset:{j*1024}{WQF} lds', 'dma',
              [f'D:wq{pos}', 'VMORD:'], [f'v{V_WD+2*half+j}', 'm0', f's{S_WQO+pos}'] + R('s', S_WQ, 4) + u, prio=HP, early=early)


def dma_x(p, gi, early=None):
    pos, t = divmod(gi, 3)
    u = [f'R:x{gi-NXG}'] if gi >= NXG else []
    k = dict(prio=HP, early=None if early is None else early - 2)
    p.salu(f's_add_u32 m0, s{S_M0X}, {(gi % NXG) * 2048}', ['m0'], [f's{S_M0X}'], **k)
    p.salu(f's_add_u32 s{S_XS}, s{S_XO+pos}, {t*16384}', [f's{S_XS}'], [f's{S_XO+pos}'], **k)
    for j in range(2):
        p.raw(f'buffer_load_dwordx4 v{V_XO+j}, {s(S_X,4)}, s{S_XS} offen offset:{j*1024}{XF} lds', 'dma',
              [f'D:x{gi}', 'VMORD:'], [f'v{V_XO+j}', 'm0', f's{S_XS}'] + R('s', S_X, 4) + u, prio=HP, early=early)


def read_x(p, gi, early=None):
    pos, t = divmod(gi, 3)
    for e in range(2):
        d = A_X + (pos * 6 + e * 3 + t) * 4
        p.raw(f'ds_read_b128 {a(d,4)}, v{V_XA+e} offset:{(gi % NXG) * 2048}', 'ds', R('a', d, 4) + [f'R:x{gi}', 'R:xall'],
              [f'v{V_XA+e}', f'D:x{gi}'], prio=HP, early=early)


def dma_kv(p, which, J, slot, free=None, pieces=(0, 1, 2, 3), early=None, step=0, setm0=True):
    S, vo = (S_K, V_KD) if which == 'K' else (S_V, V_VD)
    assert free is None or any(free in o.defs for o in p.ops), (which, J, free)
    u = [free] if free else []
    k = dict(prio=HP, early=None if early is None else early - 2)
    if setm0:
        p.salu(f's_add_u32 m0, s{S_M0K}, {slot*16384}', ['m0'], [f's{S_M0K}'] + u, **k)
    if pieces[0] == 0:
        p.salu(f's_mov_b32 s{S_KVO}, {J*16384}', [f's{S_KVO}'], u, **k)
    for n, j in enumerate(pieces):
        p.raw(f'buffer_load_dwordx4 v{vo}, {s(S,4)}, s{S_KVO} offen offset:{j*1024}{KVF} lds', 'dma',
              [f'D:{which}{J}', 'VMORD:'], [f'v{vo}', 'm0', f's{S_KVO}'] + R('s', S, 4) + u, prio=HP,
              early=None if early is None else int(early + n * step))


def dma_wo(p, pieces, early=None):
    p.salu(f's_add_u32 m0, s{S_M0K}, {WOSLOT*16384}', ['m0'], [f's{S_M0K}'], prio=HP, early=None if early is None else early - 1)
    for j in pieces:
        p.raw(f'buffer_load_dwordx4 v{V_OD+j}, {s(S_WO,4)}, 0 offen offset:{j*1024}{WOF} lds', 'dma',
              ['D:wo', 'VMORD:'], [f'v{V_OD+j}', 'm0'] + R('s', S_WO, 4), prio=HP, early=early)


def barrier(p, uses, defs, **k):
    return p.raw('s_barrier', 'bar', list(defs) + ['BARORD:'], list(uses), **k)


def qacc(ks, b2, t): return V_O + ((ks * 2 + b2) * 3 + t) * 4
def oacc(dt, t): return V_O + (dt * 3 + t) * 4
def qfrag(ks, t): return V_Q + (ks * 3 + t) * 4
def sreg(st, u, t): return V_S + (st & 1) * 24 + (u * 3 + t) * 4
def preg(st, t): return V_P + (st & 1) * 12 + t * 4


KSLOT = [8, 7, 1, 6, 4, 8, 7, 1]
VSLOT = [9, 0, 2, 3, 5, 9, 0, 2]
KBASE = [7, 7, 1, 4, 4, 7, 7, 1]
VBASE = [6, 0, 0, 0, 5, 6, 0, 0]
WOSLOT = 7


def k1_main(p):
    DSWIN = int(E('DSWIN', 12))
    WQWIN = int(E('WQWIN', 27))
    wr = [0]

    def wq_frag(pos, e, ks, b2):
        d = A_WR + (wr[0] % NWR) * 4
        wr[0] += 1
        for m in range(2):
            off = (pos % 3) * 8192 + e * 4096 + m * 1024 + 8 * b2
            p.raw(f'ds_read_b64_tr_b16 {a(d+2*m,2)}, v{V_WA+ks} offset:{off}', 'ds',
                  R('a', d + 2 * m, 2) + [f'R:wq{pos}'], [f'v{V_WA+ks}', f'L:wq{pos}'], win=WQWIN - sched.DS_LAT)
        return d

    def q_mfmas(pos, e, ks, b2):
        d = wq_frag(pos, e, ks, b2)
        for t in range(3):
            acc = qacc(ks, b2, t)
            first = pos == 0 and e == 0
            p.mfma(('v', acc), ('a', d), ('a', A_X + (pos * 6 + e * 3 + t) * 4), None if first else ('v', acc))

    def convert_q(ks):
        for t in range(3):
            for b2 in range(2):
                r0 = qacc(ks, b2, t)
                for i in range(4):
                    p.valu(f'v_mul_f32 v{r0+i}, s{S_SC}, v{r0+i}', [f'v{r0+i}'], [f'v{r0+i}', f's{S_SC}'])
                for h2 in range(2):
                    d = qfrag(ks, t) + 2 * b2 + h2
                    p.valu(f'v_cvt_pk_bf16_f32 v{d}, v{r0+2*h2}, v{r0+2*h2+1}', [f'v{d}'], R('v', r0 + 2 * h2, 2))

    def wo_publish(early):
        for n4 in range(4):
            for m in range(2):
                d = A_WO + n4 * 4 + 2 * m
                p.raw(f'ds_read_b64_tr_b16 {a(d,2)}, v{V_OA+n4} offset:{m*2048}', 'ds',
                      R('a', d, 2) + ['R:wo'], [f'v{V_OA+n4}', 'D:wo'], early=early, prio=HP // 2)

    def wo_store(early, n4):
        d = A_WO + n4 * 4
        p.raw(f'buffer_store_dwordx4 {a(d,4)}, v{V_L16}, {s(S_WD,4)}, 0 offen offset:{n4*1024}{STF}', 'vms',
              ['VMORD:', 'D:wost'], R('a', d, 4) + [f'v{V_L16}'] + R('s', S_WD, 4), early=early, prio=HP)

    ev = []
    XL = int(E('XLEAD', 40))
    XP = float(E('XPACE', 12))
    xr = lambda gi: -10 if gi < 3 else max(min(16 * gi - XL, int(XP * gi + float(E('XOFS', 0)))), int(E('XR0', 28)) + 5 * (gi - 3))
    for gi in range(3, 24):
        ev.append((xr(gi), 0, lambda g, gi=gi: read_x(p, gi, g)))
    for gi in range(NPREX, 24):
        g0 = 1 + 5 * (gi - NPREX)
        if gi >= NXG:
            g0 = max(g0, xr(gi - NXG) + 9)
        ev.append((g0, 1, lambda g, gi=gi: dma_x(p, gi, g)))
    if NPREW < 3:
        ev.append((3, 1, lambda g: dma_wq(p, 2, 0, None, g)))
        ev.append((8, 1, lambda g: dma_wq(p, 2, 1, None, g)))
    for pos in range(3, 8):
        for half in range(2):
            ev.append((48 * (pos - 3) + 28 + 14 * half, 1, lambda g, pos=pos, half=half: dma_wq(p, pos, half, f'F:q{pos-2}', g)))
    G0, G1 = int(E('AG0', 215)), int(E('AG1', 1050))
    tiles = [('V', 0, None), ('K', 1, f'F:q{WOREL}'), ('V', 1, f'F:q{XREL}'), ('K', 2, f'F:q{XREL}'), ('V', 2, f'F:q{XREL}'),
             ('K', 3, 'F:q6'), ('V', 3, 'F:qe'), ('K', 4, 'F:qe'), ('V', 4, 'F:qe'),
             ('K', 5, 'F:a1'), ('V', 5, 'F:a1'), ('K', 6, 'F:a2'), ('V', 6, 'F:a2'), ('K', 7, 'F:a3'), ('V', 7, 'F:a3')]
    stp = (G1 - G0) / (4.0 * len(tiles))
    rest = []
    for n, (w_, J, fr) in enumerate(tiles):
        g0 = G0 + 4 * n * stp
        if g0 + 3 * stp < 360:
            for j0 in (0, 2):
                gq = int(g0 + j0 * stp)
                if fr:
                    gq = max(gq, 48 * (int(fr[3]) - 1) + 24 + j0)
                ev.append((gq, 1, lambda g, w_=w_, J=J, j0=j0, fr=fr: dma_kv(p, w_, J, (KSLOT if w_ == 'K' else VSLOT)[J], fr, (j0, j0 + 1), g)))
        else:
            rest.append((g0, (w_, J, fr)))
    for nm, dflt in (('WO', 44), ('K0', 20)):
        g0 = int(E(nm + 'G', dflt))
        if g0 >= 0:
            for j0 in (0, 2):
                if nm == 'WO':
                    ev.append((g0 + 6 * j0, 1, lambda g, j0=j0: dma_wo(p, (j0, j0 + 1), g)))
                else:
                    ev.append((g0 + 6 * j0, 1, lambda g, j0=j0: dma_kv(p, 'K', 0, KSLOT[0], None, (j0, j0 + 1), g)))
    ev.append((int(E('WORD', 150)), 2, wo_publish))
    for n4 in range(4):
        ev.append((int(E('WOST', 290)) + 4 * n4, 1, lambda g, n4=n4: wo_store(g, n4)))
    ev.sort(key=lambda t: t[:2])

    def flush(upto):
        while ev and ev[0][0] < upto:
            g, _, f = ev.pop(0)
            f(g)

    for pos in range(8):
        uses = [f'D:wq{pos}']
        if pos >= 1:
            uses.append(f'R:wq{pos-1}')
        if pos == WOREL:
            uses.append('R:wo')
        if pos == XREL:
            uses.append('R:xall')
        barrier(p, uses, [f'L:wq{pos}', f'F:q{pos}'], win=WQWIN - sched.DS_LAT + 1)
        if pos == 0:
            for i_, g_ in enumerate(STG): stamp(p, 1 + i_, g_)
            for gi in range(3):
                read_x(p, gi)
        flush(48 * pos + 24)
        if pos < 7:
            for e in range(2):
                for ks in range(4):
                    for b2 in range(2):
                        q_mfmas(pos, e, ks, b2)
        else:
            for ks in range(4):
                for e in range(2):
                    for b2 in range(2):
                        q_mfmas(pos, e, ks, b2)
                convert_q(ks)
    p.valu(f'v_mov_b32 v{V_T+4}, 0x3f803f80', [f'v{V_T+4}'])
    for i in range(4):
        p.valu(f'v_accvgpr_write_b32 a{A_ONE+i}, v{V_T+4}', [f'a{A_ONE+i}'], [f'v{V_T+4}'])
    if not FT:
        for i in range(12):
            p.valu(f'v_mov_b32 v{V_NM+i}, 0', [f'v{V_NM+i}'])

    kr = [0]
    vr = [0]
    kbase = [KBASE[0]]
    vbase = [VBASE[0]]

    def k_frag(st, u, ks):
        J = st >> 1
        sl = KSLOT[J]
        if KBASE[J] != kbase[0]:
            dlt = (KBASE[J] - kbase[0]) * 16384
            kbase[0] = KBASE[J]
            for k2 in range(4):
                p.valu(f'v_add_u32 v{V_KA+k2}, {dlt}, v{V_KA+k2}', [f'v{V_KA+k2}'], [f'v{V_KA+k2}'])
        d = A_KR + (kr[0] % NKR) * 4
        kr[0] += 1
        off = (sl - kbase[0]) * 16384 + (2 * (st & 1) + u) * 1024
        p.raw(f'ds_read_b128 {a(d,4)}, v{V_KA+ks} offset:{off}', 'ds',
              R('a', d, 4) + [f'R:K{J}'], [f'v{V_KA+ks}', f'L:K{J}'], win=DSWIN)
        return d

    def v_frag(st, dt):
        J = st >> 1
        sl = VSLOT[J]
        if VBASE[J] != vbase[0]:
            dlt = (VBASE[J] - vbase[0]) * 16384
            vbase[0] = VBASE[J]
            for k2 in range(8):
                p.valu(f'v_add_u32 v{V_VA+k2}, {dlt}, v{V_VA+k2}', [f'v{V_VA+k2}'], [f'v{V_VA+k2}'])
        d = A_VR + (vr[0] % NVR) * 4
        vr[0] += 1
        for m in range(2):
            off = (sl - vbase[0]) * 16384 + (st & 1) * 2048 + m * 1024
            p.raw(f'ds_read_b64_tr_b16 {a(d+2*m,2)}, v{V_VA+dt} offset:{off}', 'ds',
                  R('a', d + 2 * m, 2) + [f'R:V{J}'], [f'v{V_VA+dt}', f'L:V{J}'], win=DSWIN)
        return d

    def qk(st):
        order = [(u, ks) for ks in range(4) for u in range(2)] if st == 0 else [(u, ks) for u in range(2) for ks in range(4)]
        for u, ks in order:
            d = k_frag(st, u, ks)
            for t in range(3):
                r0 = sreg(st, u, t)
                if ks == 0:
                    c = None if (FT and st <= 1) else ('v', V_NM + 4 * t)
                else:
                    c = ('v', r0)
                p.mfma(('v', r0), ('a', d), ('v', qfrag(ks, t)), c)

    def first_max():
        T = V_T
        for t in range(3):
            rs = [sreg(0, u, t) + i for u in range(2) for i in range(4)]
            m, x = T + 2 * t, T + 2 * t + 1
            p.valu(f'v_max3_f32 v{m}, v{rs[0]}, v{rs[1]}, v{rs[2]}', [f'v{m}'], [f'v{r}' for r in rs[:3]])
            p.valu(f'v_max3_f32 v{m}, v{m}, v{rs[3]}, v{rs[4]}', [f'v{m}'], [f'v{m}'] + [f'v{r}' for r in rs[3:5]])
            p.valu(f'v_max3_f32 v{m}, v{m}, v{rs[5]}, v{rs[6]}', [f'v{m}'], [f'v{m}'] + [f'v{r}' for r in rs[5:7]])
            p.valu(f'v_max_f32 v{m}, v{m}, v{rs[7]}', [f'v{m}'], [f'v{m}', f'v{rs[7]}'])
            for sw in ('v_permlane32_swap_b32', 'v_permlane16_swap_b32'):
                p.valu(f'v_mov_b32 v{x}, v{m}', [f'v{x}'], [f'v{m}'])
                p.valu(f'{sw} v{x}, v{m}', [f'v{x}', f'v{m}'], [f'v{x}', f'v{m}'], kind='perm')
                p.valu(f'v_max_f32 v{m}, v{m}, v{x}', [f'v{m}'], [f'v{m}', f'v{x}'])
            for i in range(4):
                p.valu(f'v_sub_f32 v{V_NM+4*t+i}, 0, v{m}', [f'v{V_NM+4*t+i}'], [f'v{m}'])

    def softmax(st):
        for t in range(3):
            for u in range(2):
                r0 = sreg(st, u, t)
                for i in range(4):
                    if FT and st <= 1:
                        p.valu(f'v_add_f32 v{r0+i}, v{r0+i}, v{V_NM+4*t}', [f'v{r0+i}'], [f'v{r0+i}', f'v{V_NM+4*t}'])
                    p.valu(f'v_exp_f32 v{r0+i}, v{r0+i}', [f'v{r0+i}'], [f'v{r0+i}'], kind='trans')
                for h2 in range(2):
                    d = preg(st, t) + 2 * u + h2
                    p.valu(f'v_cvt_pk_bf16_f32 v{d}, v{r0+2*h2}, v{r0+2*h2+1}', [f'v{d}'], R('v', r0 + 2 * h2, 2))

    def pv(st):
        def lsum():
            for t in range(3):
                p.mfma(('a', A_L + 4 * t), ('a', A_ONE), ('v', preg(st, t)), None if st == 0 else ('a', A_L + 4 * t))
        if st == 15:
            lsum()
            T = V_T
            for t in range(3):
                p.valu(f'v_accvgpr_read_b32 v{T+t}, a{A_L+4*t}', [f'v{T+t}'], [f'a{A_L+4*t}'], prio=HP)
                p.valu(f'v_rcp_f32 v{T+3+t}, v{T+t}', [f'v{T+3+t}'], [f'v{T+t}'], kind='trans', prio=HP)
            LO, HI = (127 - 30) << 23, (127 + 30) << 23
            X = V_NM
            for t in range(3):
                p.valu(f'v_subrev_u32 v{X+t}, {LO:#x}, v{T+t}', [f'v{X+t}'], [f'v{T+t}'], prio=HP)
            p.valu(f'v_max3_u32 v{X}, v{X}, v{X+1}, v{X+2}', [f'v{X}'], R('v', X, 3), prio=HP)
            p.valu(f'v_cmp_lt_u32 vcc, {HI-LO:#x}, v{X}', ['vcc'], [f'v{X}'], prio=HP)
            p.salu('s_or_b32 s7, vcc_lo, vcc_hi', ['s7'], ['vcc'], prio=HP)
            p.valu(f'v_mov_b32 v{X+1}, s7', [f'v{X+1}'], ['s7'], prio=HP)
            p.salu(f's_lshl_b32 s58, s{S_W}, 2', ['s58'], [f's{S_W}'], prio=HP)
            p.valu(f'v_mov_b32 v{X+2}, s58', [f'v{X+2}'], ['s58'], prio=HP)
            p.raw(f'ds_write_b32 v{X+2}, v{X+1} offset:{BADA}', 'dsw', ['W:bad'], [f'v{X+1}', f'v{X+2}', 'F:a7'], prio=HP)
            barrier(p, ['W:bad', 'R:K7'], ['F:ae'], prio=HP)
            p.valu(f'v_mov_b32 v{X+3}, 0', [f'v{X+3}'], prio=HP)
            p.raw(f'ds_read_b128 {v(X+4,4)}, v{X+3} offset:{BADA}', 'ds', R('v', X + 4, 4), [f'v{X+3}', 'F:ae'], prio=HP)
            p.valu(f'v_or3_b32 v{X+4}, v{X+4}, v{X+5}, v{X+6}', [f'v{X+4}'], R('v', X + 4, 3), prio=HP)
            p.valu(f'v_or_b32 v{X+4}, v{X+4}, v{X+7}', [f'v{X+4}'], [f'v{X+4}', f'v{X+7}'], prio=HP)
            p.valu(f'v_readfirstlane_b32 s7, v{X+4}', ['s7'], [f'v{X+4}'], prio=HP)
            p.salu('s_cmp_lg_u32 s7, 0\n  s_cbranch_scc1 L_redo', ['F:ok'], ['s7', 'VMORD:', 'SORD:'], prio=HP)
        for dt in range(8):
            d = v_frag(st, dt)
            for t in range(3):
                acc = oacc(dt, t)
                p.mfma(('v', acc), ('a', d), ('v', preg(st, t)), None if st == 0 else ('v', acc))
            if st == 15 and dt & 1:
                ks = dt >> 1
                for t in range(3):
                    dst = V_S + (ks * 3 + t) * 4
                    for b2 in range(2):
                        r0 = oacc(2 * ks + b2, t)
                        for i in range(4):
                            p.valu(f'v_mul_f32 v{r0+i}, v{V_T+3+t}, v{r0+i}', [f'v{r0+i}'], [f'v{r0+i}', f'v{V_T+3+t}'])
                        for h2 in range(2):
                            p.valu(f'v_cvt_pk_bf16_f32 v{dst+2*b2+h2}, v{r0+2*h2}, v{r0+2*h2+1}', [f'v{dst+2*b2+h2}'],
                                   R('v', r0 + 2 * h2, 2))
                    k = ks * 3 + t
                    so = ['0', f's{S_4K}', f's{S_8K}'][k >> 2]
                    p.raw(f'buffer_store_dwordx4 {v(dst,4)}, v{V_L16}, {s(S_OD,4)}, {so} offen offset:{(k&3)*1024}{STF}', 'vms',
                          ['VMORD:', 'D:ost'], R('v', dst, 4) + [f'v{V_L16}', f's{S_4K}', f's{S_8K}', 'F:ok'] + R('s', S_OD, 4), prio=HP)
        if st != 15:
            lsum()

    flush(10 ** 6)
    have = {None} | {f'F:q{i}' for i in range(8)}

    T = V_T

    def arrive(g):
        p.salu('s_and_b32 s7, s2, 1', ['s7'], ['s2', 'F:a0'])
        p.salu('s_lshl_b32 s7, s7, 7', ['s7'], ['s7'])
        p.valu(f'v_lshl_add_u32 v{T}, v0, 12, s7', [f'v{T}'], ['v0', 's7'])
        p.valu(f'v_mov_b32 v{T+1}, 1', [f'v{T+1}'])
        p.raw(f'buffer_atomic_add v{T+1}, v{T}, {s(S_DB,4)}, 0 offen sc1', 'vms', ['VMORD:'],
              [f'v{T}', f'v{T+1}', 'F:a0'] + R('s', S_DB, 4), prio=HP)
        srd(p, S_WS, 78, f's{S_WSO}', 131072)
        srd(p, S_OS, 78, f's{S_OSO}', 98304)
        srd(p, S_OUT, 74, f's{S_OUTO}', ('1572864', f's{S_OUTO}'))

    def chk_load(g):
        p.valu(f'v_lshlrev_b32 v{T}, 3, v{V_L16}', [f'v{T}'], [f'v{V_L16}'])
        p.raw(f'buffer_load_dword v{T+1}, v{T}, {s(S_DB,4)}, 0 offen sc1', 'vml', [f'v{T+1}', 'VMORD:'], [f'v{T}'] + R('s', S_DB, 4),
              early=g, prio=HP)

    def chk_test(g):
        p.valu(f'v_cmp_eq_u32 vcc, 0x80, v{T+1}', ['vcc'], [f'v{T+1}'], early=g, prio=HP)
        p.salu('s_cmp_eq_u32 vcc_lo, 3\n  s_cbranch_scc0 L_chk_slow\nL_chk_ret:', ['F:chk'], ['vcc', f'v{T}', f'v{T+1}'], prio=HP)

    def wo_reg(g, f):
        kk, n = divmod(f, 4)
        if n == 0:
            p.salu(f's_mov_b32 s{S_P0}, {kk*4096}', [f's{S_P0}'], ['F:chk'], early=g - 1, prio=HP)
        d = 64 + 4 * f
        p.raw(f'buffer_load_dwordx4 {a(d,4)}, v{V_WV+n}, {s(S_WS,4)}, s{S_P0} offen sc1', 'vml', R('a', d, 4) + ['VMORD:'],
              [f'v{V_WV+n}', f's{S_P0}', 'F:chk'] + R('s', S_WS, 4), early=g, prio=HP)

    def wo_lds(g, i, j, fr):
        if j == 0:
            p.salu(f's_mov_b32 s{S_P1}, {(NPF+i)*4096}', [f's{S_P1}'], ['F:chk', fr], early=g - 2, prio=HP)
        p.salu(f's_add_u32 m0, s{S_M0K}, {WLSLOT[i]*16384}', ['m0'], [f's{S_M0K}', fr], early=g - 1, prio=HP)
        p.raw(f'buffer_load_dwordx4 v{V_L16}, {s(S_WS,4)}, s{S_P1} offen offset:{j*1024} sc1 lds', 'dma', [f'D:wl{i}', 'VMORD:'],
              [f'v{V_L16}', 'm0', f's{S_P1}', 'F:chk', fr] + R('s', S_WS, 4), early=g, prio=HP)

    av = []
    for g0, (w_, J, fr) in rest:
        for j in range(4):
            av.append((int(g0 + j * stp), fr, lambda g, w_=w_, J=J, j=j, fr=fr:
                       dma_kv(p, w_, J, (KSLOT if w_ == 'K' else VSLOT)[J], fr, (j,), g, 0, j == 0 or NLD > 0)))
    CK = int(E('CK', 540))
    av.append((421, 'F:a0', arrive))
    av.append((CK, None, chk_load))
    av.append((CK + int(E('CKD', 70)), None, chk_test))
    P0, P1 = max(CK + int(E('CKD', 70)) + 6, int(E('PF0', 0))), int(E('PF1', 1000))
    for f in range(4 * NPF):
        av.append((int(P0 + (P1 - P0) * f / (4.0 * NPF)), None, lambda g, f=f: wo_reg(g, f)))
    L0, L1 = int(E('PL0', 900)), int(E('PL1', 1160))
    for i in range(NLD):
        for j in range(4):
            av.append((int(L0 + (L1 - L0) * (4 * i + j) / (4.0 * NLD)), WLFREE[i], lambda g, i=i, j=j: wo_lds(g, i, j, WLFREE[i])))
    av.sort(key=lambda t: t[0])

    def flush_rest(upto):
        keep = []
        blocked = set()
        for it in list(av):
            if it[0] < upto and it[1] in have:
                it[2](it[0])
                av.remove(it)

    flush_rest(372)
    barrier(p, ['D:K0', 'R:wq7'], ['L:K0', 'F:qe'], win=2)
    have.add('F:qe')
    flush_rest(420)
    qk(0)
    if FT:
        first_max()
    softmax(0)
    for st in range(16):
        J = st >> 1
        if st & 1 == 0:
            uses = [f'D:V{J}'] + ([f'D:K{J+1}'] if J < 7 else [])
            uses += [f'R:V{J-1}', f'R:K{J-1}'] if J >= 1 else ['D:wost']
            barrier(p, uses, [f'L:V{J}', f'L:K{J+1}', f'F:a{J}'], win=2)
            have.add(f'F:a{J}')
            flush_rest(420 + 102 * (J + 1) if J < 7 else 10 ** 6)
        if st < 15:
            qk(st + 1)
            softmax(st + 1)
        pv(st)
    assert not av


WLSLOT = [6, 3, 4, 5, 8, 9, 7]
WLFREE = ['F:a4', 'F:a4', 'F:a5', 'F:a5', 'F:a6', 'F:a6', 'F:a7']


def phase4():
    T = V_T
    ACC = 16
    nres = 4 * NPF
    pool = [('a', i) for i in range(64 + 4 * nres, 256, 4)] + [('a', i) for i in range(0, 64, 4)] + \
           [('v', i) for i in range(136, 244, 4)]
    NLR = 8 if NLD else 0
    lring = [pool.pop() for _ in range(NLR)]
    oring = [('v', i) for i in range(64, 136, 4)]
    first = 4 * (NPF + NLD)
    slot = {}
    for f in range(nres):
        slot[f] = ('a', 64 + 4 * f)
    for n_, f in enumerate(range(first, 128)):
        slot[f] = pool[n_] if n_ < len(pool) else slot[n_ - len(pool)]
    so_state = {}

    def wload(p, f, **k):
        kk, n = divmod(f, 4)
        if so_state.get('w') != kk:
            so_state['w'] = kk
            p.salu(f's_mov_b32 s{S_P0}, {kk*4096}', [f's{S_P0}'], prio=HP)
        r = slot[f]
        p.raw(f'buffer_load_dwordx4 {rng(r[0], r[1], 4)}, v{V_WV+n}, {s(S_WS,4)}, s{S_P0} offen sc1', 'vml',
              R(r[0], r[1], 4) + ['VMORD:'], [f'v{V_WV+n}', f's{S_P0}'] + R('s', S_WS, 4), prio=HP, **k)

    def oload(p, kk, t, **k):
        if so_state.get('o') != kk:
            so_state['o'] = kk
            p.salu(f's_mov_b32 s{S_P1}, {kk*3072}', [f's{S_P1}'], prio=HP)
        r = oring[(kk * 3 + t) % len(oring)]
        p.raw(f'buffer_load_dwordx4 {rng(r[0], r[1], 4)}, v{V_L16}, {s(S_OS,4)}, s{S_P1} offen offset:{t*1024} sc1', 'vml',
              R(r[0], r[1], 4) + ['VMORD:'], [f'v{V_L16}', f's{S_P1}'] + R('s', S_OS, 4), prio=HP, **k)

    p = Prog()
    V = p.valu
    NA, NB = int(E('NA', 4)), int(E('NB', 20))
    nxt = first
    barrier(p, [], ['F:p4'])
    for _ in range(NA):
        wload(p, nxt); nxt += 1
    for n in range(4):
        p.salu(f's_add_u32 s7, s{S_W}, {n}', ['s7'], [f's{S_W}'])
        p.salu('s_and_b32 s7, s7, 3', ['s7'], ['s7'])
        p.salu('s_mul_i32 s7, s7, 9216', ['s7'], ['s7'])
        if n:
            p.salu(f's_add_u32 s7, s7, {(n-1)*3072}', ['s7'], ['s7'])
        V(f'v_add_u32 v{8+n}, s7, v{V_L16}', [f'v{8+n}'], ['s7', f'v{V_L16}'])
        p.salu(f's_add_u32 s7, s{S_M0K}, {3*16384}', ['s7'], [f's{S_M0K}'])
        V(f'v_add_u32 v{4+n}, s7, v{V_WV+n}', [f'v{4+n}'], ['s7', f'v{V_WV+n}'])
    V('v_and_b32 v12, 15, v0', ['v12'], ['v0'])
    V('v_lshlrev_b32 v12, 10, v12', ['v12'], ['v12'])
    V('v_bfe_u32 v13, v0, 4, 2', ['v13'], ['v0'])
    V('v_lshl_add_u32 v12, v13, 3, v12', ['v12'], ['v12', 'v13'])
    V(f'v_mov_b32 v{T}, 1', [f'v{T}'])
    p.salu('s_mov_b32 s42, 16384', ['s42'])
    p.salu('s_mov_b32 s43, 32768', ['s43'])
    p.raw(f'buffer_store_dword v{T}, v{V_FW}, {s(S_FL,4)}, 0 offen sc1', 'vms', ['VMORD:'],
          [f'v{T}', f'v{V_FW}', 'D:ost'] + R('s', S_FL, 4))
    stamp(p, NSTAMP - 4)
    for _ in range(min(NB, len(pool) - NA)):
        wload(p, nxt); nxt += 1
    p.salu('s_mov_b32 s58, 0', ['s58'])
    p.raw('L_poll:', 'label')
    p.raw(f'buffer_load_dword v{T+1}, v{V_FP}, {s(S_FL,4)}, 0 offen sc1', 'vml', [f'v{T+1}', 'VMORD:'], [f'v{V_FP}'] + R('s', S_FL, 4))
    V(f'v_cmp_eq_u32 vcc, 1, v{T+1}', ['vcc'], [f'v{T+1}'])
    p.salu('s_add_u32 s58, s58, 1', ['s58'], ['s58'])
    p.salu('s_cmp_eq_u32 vcc_lo, 0xff\n  s_cbranch_scc1 L_go', [], ['vcc'])
    p.salu(f's_cmp_lt_u32 s58, {SPIN}\n  s_cbranch_scc1 L_poll\nL_go:', [], ['s58'])
    stamp(p, NSTAMP - 3)
    NPRE = int(E('NPREO', 4))
    for kk in range(NPRE):
        for t in range(3):
            oload(p, kk, t)
    win = p.ops
    p = Prog()
    lr = [0]
    lbase = [3]
    wq_ = list(range(nxt, 128))
    for kk in range(32):
        for n in range(4):
            f = kk * 4 + n
            if NPF <= kk < NPF + NLD:
                sl = WLSLOT[kk - NPF]
                if not (0 <= sl - lbase[0] <= 3):
                    for k2 in range(4):
                        p.valu(f'v_add_u32 v{4+k2}, {(7 - lbase[0])*16384}, v{4+k2}', [f'v{4+k2}'], [f'v{4+k2}'])
                    lbase[0] = 7
                A = lring[lr[0] % NLR]
                lr[0] += 1
                p.raw(f'ds_read_b128 {rng(A[0], A[1], 4)}, v{4+n} offset:{(sl - lbase[0])*16384}', 'ds', R(A[0], A[1], 4),
                      [f'v{4+n}', f'D:wl{kk-NPF}'], win=14)
            else:
                A = slot[f]
            for t in range(3):
                acc = ACC + (n * 3 + t) * 4
                p.mfma(('v', acc), A, oring[(kk * 3 + t) % len(oring)], None if kk == 0 else ('v', acc))
            if n == 0 and kk + NPRE < 32:
                for t in range(3):
                    oload(p, kk + NPRE, t)
            if n == 3:
                cnt = 0
                while wq_ and cnt < int(E('WPER', 2)) or (wq_ and wq_[0] // 4 <= kk + NPRE + 1):
                    f2 = wq_[0]
                    n2 = f2 - first - len(pool)
                    if n2 >= 0 and n2 // 4 > kk:
                        break
                    wload(p, wq_.pop(0))
                    cnt += 1
    assert not wq_
    body = schedule(p.ops, True, 'p4')
    p = Prog()
    V = p.valu
    stamp(p, NSTAMP - 2)
    for n in range(1, 4):
        for t in range(3):
            acc = ACC + (n * 3 + t) * 4
            p.raw(f'ds_write_b128 v{8+n}, {v(acc,4)} offset:{t*1024}', 'dsw', ['W:red'], [f'v{8+n}'] + R('v', acc, 4))
    barrier(p, ['W:red'], ['L:red'])
    for sl in range(3):
        for t in range(3):
            d = 64 + (sl * 3 + t) * 4
            p.raw(f'ds_read_b128 {v(d,4)}, v8 offset:{(sl*3+t)*1024}', 'ds', R('v', d, 4), ['v8', 'L:red'])
    for t in range(3):
        acc = ACC + t * 4
        for sl in range(3):
            d = 64 + (sl * 3 + t) * 4
            for i in range(4):
                V(f'v_add_f32 v{acc+i}, v{acc+i}, v{d+i}', [f'v{acc+i}'], [f'v{acc+i}', f'v{d+i}'])
        for h2 in range(2):
            V(f'v_cvt_pk_bf16_f32 v{112+2*t+h2}, v{acc+2*h2}, v{acc+2*h2+1}', [f'v{112+2*t+h2}'], R('v', acc + 2 * h2, 2))
        so = ['0', 's42', 's43'][t]
        p.raw(f'buffer_store_dwordx2 {v(112+2*t,2)}, v12, {s(S_OUT,4)}, {so} offen', 'vms', [],
              R('v', 112 + 2 * t, 2) + ['v12', 's42', 's43'] + R('s', S_OUT, 4))
    if STAMP:
        p.raw('s_waitcnt vmcnt(0)', 'wait')
    stamp(p, NSTAMP - 1)
    return win, body, p.ops


def redo_path(L):
    T = V_T
    ko = (KSLOT[7] - KBASE[7]) * 16384
    vo = (VSLOT[7] - VBASE[7]) * 16384

    def drain(p):
        p.raw('s_waitcnt vmcnt(0) lgkmcnt(0)', 'wait')
        p.raw('s_nop 7', 'nop')
        p.raw('s_nop 7', 'nop')

    def stage(p, withv):
        p.raw('s_barrier', 'bar')
        for w_, sl in (('K', KSLOT[7]), ('V', VSLOT[7]))[:1 + withv]:
            S, vo_ = (S_K, V_KD) if w_ == 'K' else (S_V, V_VD)
            p.salu(f's_add_u32 m0, s{S_M0K}, {sl*16384}', ['m0'])
            for j in range(4):
                p.raw(f'buffer_load_dwordx4 v{vo_}, {s(S,4)}, s{S_KVO} offen offset:{j*1024} lds', 'dma', [], ['m0'])
        p.raw('s_waitcnt vmcnt(0)', 'wait')
        p.raw('s_barrier', 'bar')

    def scores(p, uu, dst, c):
        for ks in range(4):
            p.raw(f'ds_read_b128 {a(4*ks,4)}, v{V_KA+ks} offset:{ko + uu*1024}', 'ds', R('a', 4 * ks, 4))
        for ks in range(4):
            for t in range(3):
                p.mfma(('v', dst + 4 * t), ('a', 4 * ks), ('v', qfrag(ks, t)),
                       (c(t) if ks == 0 else ('v', dst + 4 * t)))

    def loop_end(p, lab):
        drain(p)
        p.salu(f's_add_u32 s{S_KVO}, s{S_KVO}, 16384', [f's{S_KVO}'])
        p.salu(f's_cmp_lt_u32 s{S_KVO}, 131072\n  s_cbranch_scc1 {lab}')

    L.append('L_redo:')
    p = Prog()
    drain(p)
    for t in range(3):
        p.valu(f'v_mov_b32 v{T+t}, 0xff800000', [f'v{T+t}'])
    p.salu(f's_mov_b32 s{S_KVO}, 0', [f's{S_KVO}'])
    p.raw('L_redo1:', 'label')
    stage(p, 0)
    for uu in range(4):
        scores(p, uu, V_S, lambda t: None)
        for t in range(3):
            r0 = V_S + 4 * t
            p.valu(f'v_max3_f32 v{T+t}, v{T+t}, v{r0}, v{r0+1}', [f'v{T+t}'], [f'v{T+t}', f'v{r0}', f'v{r0+1}'])
            p.valu(f'v_max3_f32 v{T+t}, v{T+t}, v{r0+2}, v{r0+3}', [f'v{T+t}'], [f'v{T+t}', f'v{r0+2}', f'v{r0+3}'])
    loop_end(p, 'L_redo1')
    for t in range(3):
        m, x = T + t, T + 3
        for sw in ('v_permlane32_swap_b32', 'v_permlane16_swap_b32'):
            p.valu(f'v_mov_b32 v{x}, v{m}', [f'v{x}'], [f'v{m}'])
            p.valu(f'{sw} v{x}, v{m}', [f'v{x}', f'v{m}'], [f'v{x}', f'v{m}'], kind='perm')
            p.valu(f'v_max_f32 v{m}, v{m}, v{x}', [f'v{m}'], [f'v{m}', f'v{x}'])
        for i in range(4):
            p.valu(f'v_sub_f32 v{V_NM+4*t+i}, 0, v{m}', [f'v{V_NM+4*t+i}'], [f'v{m}'])
    for r in range(96):
        p.valu(f'v_mov_b32 v{V_O+r}, 0', [f'v{V_O+r}'])
    for r in range(12):
        p.valu(f'v_accvgpr_write_b32 a{A_L+r}, 0', [f'a{A_L+r}'])
    p.salu(f's_mov_b32 s{S_KVO}, 0', [f's{S_KVO}'])
    drain(p)
    p.raw('L_redo2:', 'label')
    stage(p, 1)
    for e in range(2):
        for u in range(2):
            scores(p, 2 * e + u, V_S + 12 * u, lambda t: ('v', V_NM + 4 * t))
        for t in range(3):
            for u in range(2):
                r0 = V_S + 12 * u + 4 * t
                for i in range(4):
                    p.valu(f'v_exp_f32 v{r0+i}, v{r0+i}', [f'v{r0+i}'], [f'v{r0+i}'], kind='trans')
                for h2 in range(2):
                    d = V_P + 4 * t + 2 * u + h2
                    p.valu(f'v_cvt_pk_bf16_f32 v{d}, v{r0+2*h2}, v{r0+2*h2+1}', [f'v{d}'], R('v', r0 + 2 * h2, 2))
        for t in range(3):
            p.mfma(('a', A_L + 4 * t), ('a', A_ONE), ('v', V_P + 4 * t), ('a', A_L + 4 * t))
        for d0 in (0, 4):
            for dt in range(d0, d0 + 4):
                for m in range(2):
                    d = A_VR + 4 * (dt - d0) + 2 * m
                    p.raw(f'ds_read_b64_tr_b16 {a(d,2)}, v{V_VA+dt} offset:{vo + e*2048 + m*1024}', 'ds', R('a', d, 2))
            for dt in range(d0, d0 + 4):
                for t in range(3):
                    p.mfma(('v', oacc(dt, t)), ('a', A_VR + 4 * (dt - d0)), ('v', V_P + 4 * t), ('v', oacc(dt, t)))
    loop_end(p, 'L_redo2')
    for t in range(3):
        p.valu(f'v_accvgpr_read_b32 v{T+t}, a{A_L+4*t}', [f'v{T+t}'], [f'a{A_L+4*t}'])
        p.valu(f'v_rcp_f32 v{T+3+t}, v{T+t}', [f'v{T+3+t}'], [f'v{T+t}'], kind='trans')
    for ks in range(4):
        for t in range(3):
            dst = V_S + (ks * 3 + t) * 4
            for b2 in range(2):
                r0 = oacc(2 * ks + b2, t)
                for i in range(4):
                    p.valu(f'v_mul_f32 v{r0+i}, v{T+3+t}, v{r0+i}', [f'v{r0+i}'], [f'v{r0+i}', f'v{T+3+t}'])
                for h2 in range(2):
                    p.valu(f'v_cvt_pk_bf16_f32 v{dst+2*b2+h2}, v{r0+2*h2}, v{r0+2*h2+1}', [f'v{dst+2*b2+h2}'],
                           R('v', r0 + 2 * h2, 2))
            k = ks * 3 + t
            so = ['0', f's{S_4K}', f's{S_8K}'][k >> 2]
            p.raw(f'buffer_store_dwordx4 {v(dst,4)}, v{V_L16}, {s(S_OD,4)}, {so} offen offset:{(k&3)*1024}{STF}', 'vms',
                  [], R('v', dst, 4))
    drain(p)
    p.raw('s_branch L_stored', 'salu')
    emit(L, finish(p.ops, 'redo'))
    T = V_T
    L += ['L_chk_slow:', '  s_mov_b32 s58, 0', 'L_chk_loop:', '  s_sleep 2',
          f'  buffer_load_dword v{T+1}, v{T}, {s(S_DB,4)}, 0 offen sc1', '  s_waitcnt vmcnt(0)',
          f'  v_cmp_eq_u32 vcc, 0x80, v{T+1}', '  s_add_u32 s58, s58, 1', '  s_nop 3', '  s_cmp_eq_u32 vcc_lo, 3',
          '  s_cbranch_scc1 L_chk_ret', f'  s_cmp_lt_u32 s58, {SPIN}', '  s_cbranch_scc1 L_chk_loop', '  s_branch L_chk_ret']


def finish(ops, name, vmq=None):
    ops, vq, dq = insert_waits(ops, vmq)
    ops, nn = pad_hazards(ops)
    print(f'; {name}: {len(ops)} instrs, est {estimate(ops)} clks, nops {nn}, waits {sum(o.kind == "wait" for o in ops)}',
          file=sys.stderr)
    return ops


def emit(L, ops):
    for o in ops:
        L.append('  ' + o.text)


def stamps_out(L, n, end, wsreg=78, slot0=0):
    L += ['  s_waitcnt lgkmcnt(0)',
          f'  s_mov_b32 s8, s{wsreg}', f'  s_mov_b32 s9, s{wsreg+1}', '  s_mov_b32 s10, 0x10000', '  s_mov_b32 s11, 0x20000']
    for r in range(2 * n):
        L.append(f'  v_mov_b32 v{4+r}, s{80+r}')
    L += ['  s_lshl_b32 s7, s2, 7', '  v_mov_b32 v2, s7', f'  v_cmp_eq_u32 vcc, {int(E("STW", 0))*64}, v0', '  s_nop 4',
          '  s_and_saveexec_b64 s[12:13], vcc', f'  s_cbranch_execz {end}']
    for q in range(n):
        L.append(f'  buffer_store_dwordx2 v[{4+2*q}:{5+2*q}], v2, s[8:11], 0 offen offset:{8*(q+slot0)}')
    L.append('  s_waitcnt vmcnt(0)')


def gen_k1(L, name):
    L += [f'.globl {name}', '.p2align 8', f'.type {name},@function', f'{name}:']
    if STAMP:
        L.append('  s_memrealtime s[80:81]' if STAMP == 1 else '  s_memtime s[80:81]')
    L += ['  s_cmp_ge_u32 s2, 256', '  s_cbranch_scc1 L_k1_end']
    p = Prog()
    k1_prologue(p)
    dma_wq(p, 0, 0); dma_wq(p, 0, 1)
    for gi in range(3):
        dma_x(p, gi)
    k1_prologue2(p)
    dma_wq(p, 1, 0); dma_wq(p, 1, 1)
    for gi in range(3, NPREX):
        dma_x(p, gi)
    k1_prologue3(p, KBASE[0], VBASE[0])
    if WQPF:
        T = V_T
        p.valu(f'v_bfe_u32 v{T+4}, v0, 1, 4', [f'v{T+4}'], ['v0'])
        p.valu(f'v_and_b32 v{T+5}, 1, v0', [f'v{T+5}'], ['v0'])
        p.valu(f'v_lshlrev_b32 v{T+5}, 7, v{T+5}', [f'v{T+5}'], [f'v{T+5}'])
        p.valu(f'v_lshl_add_u32 v{T+4}, v{T+4}, 13, v{T+5}', [f'v{T+4}'], [f'v{T+4}', f'v{T+5}'])
        p.salu(f's_lshl_b32 s7, s{S_B}, 2', ['s7'], [f's{S_B}'])
        p.salu(f's_add_u32 s7, s7, s{S_W}', ['s7'], ['s7', f's{S_W}'])
        p.salu('s_lshl_b32 s7, s7, 17', ['s7'], ['s7'])
        p.raw(f'buffer_load_dword v{V_S}, v{T+4}, {s(S_WQ,4)}, s7 offen', 'vml', [f'v{V_S}', 'VMORD:'], [f'v{T+4}', 's7'] + R('s', S_WQ, 4))
    if NPREW == 3:
        dma_wq(p, 2, 0); dma_wq(p, 2, 1)
    if int(E('K0G', 20)) < 0:
        dma_kv(p, 'K', 0, KSLOT[0])
    if int(E('WOG', 44)) < 0:
        dma_wo(p, (0, 1, 2, 3))
    pre = p.ops
    p = Prog()
    k1_main(p)
    body = schedule(p.ops, True, 'k1')
    win, body4, epi = phase4()
    lab = [Op('L_stored:', 'label')]
    emit(L, finish(pre + body + lab + win + body4 + epi, 'main'))
    if STAMP:
        stamps_out(L, NSTAMP, 'L_k1_end')
    L += ['L_k1_end:', '  s_endpgm', 'L_codeend:']
    redo_path(L)


def desc(L, name):
    L += ['.section .rodata,"a"', '.p2align 6', f'.amdhsa_kernel {name}', '  .amdhsa_next_free_vgpr 512',
          '  .amdhsa_next_free_sgpr 102', '  .amdhsa_accum_offset 256', '  .amdhsa_group_segment_fixed_size 0',
          '  .amdhsa_kernarg_size 64', '  .amdhsa_user_sgpr_count 2', '  .amdhsa_user_sgpr_kernarg_segment_ptr 1',
          '  .amdhsa_system_sgpr_workgroup_id_x 1', '.end_amdhsa_kernel']


def main():
    out = sys.argv[1]
    L = ['; @launch grid=(256,1,1) block=(256,1,1) lds=163840',
         '.amdgcn_target "amdgcn-amd-amdhsa--gfx950"', '.text']
    gen_k1(L, KNAME)
    desc(L, KNAME)
    open(out, 'w').write('\n'.join(L) + '\n')


if __name__ == '__main__':
    main()
```

```python
import sys, os, struct, math
from sched import *
import sched

KNAME = 'standalone__mha_block_cached__near_ridge_kernel'
E = os.environ.get
KVF = {'0': '', 'nt': ' nt'}[E('KVF', 'nt')]
XF = {'0': '', 'nt': ' nt', 'sc1': ' sc1'}[E('XF', '0')]
WQF = {'0': '', 'nt': ' nt', 'sc1': ' sc1'}[E('WQF', '0')]
WOF = {'0': '', 'nt': ' nt'}[E('WOF', 'nt')]
STF = {'0': '', 'sc1': ' sc1'}[E('STF', 'sc1')]
FT = int(E('FT', 0))
STAMP = int(E('STAMP', 0))
ROT = int(E('ROT', -1))
NPREX = int(E('NPREX', 6))
NPREW = int(E('NPREW', 2))
WOREL = int(E('WOREL', 5))
XREL = int(E('XREL', 7))
WQPF = int(E('WQPF', 1))
CODEPF = int(E('CODEPF', 2))
XLIN = int(E('XLIN', 0))
SH = 0 if int(E('NOSHIFT', 0)) else 8
NOX = int(E('NOX', 0))

WOFF = 0x100000
OOFF = 0x600000
FOFF = 0x80000
NPF = int(E('NPF', 12))
NLD = int(E('NLD', 7))
SPIN = 200000
SCALE = struct.unpack('<I', struct.pack('<f', math.log2(math.e) / math.sqrt(128.0)))[0]


def v(i, n=1): return rng('v', i, n)
def a(i, n=1): return rng('a', i, n)
def s(i, n=1): return rng('s', i, n)


class Prog:
    def __init__(self):
        self.ops = []

    def add(self, op):
        self.ops.append(op)
        return op

    def salu(self, text, defs=(), uses=(), **k):
        d = list(defs) + ['SORD:']
        if not text.startswith(('s_mov', 's_mul', 's_load', 's_getpc', 's_cselect')):
            d.append('scc')
        return self.add(Op(text, 'salu', d, uses, **k))

    def valu(self, text, defs=(), uses=(), kind='valu', **k):
        return self.add(Op(text, kind, defs, uses, **k))

    def mfma(self, d, A, B, c):
        dr = R(d[0], d[1], 4)
        cr = R(c[0], c[1], 4) if c else []
        ct = rng(c[0], c[1], 4) if c else '0'
        t = f'v_mfma_f32_16x16x32_bf16 {rng(d[0], d[1], 4)}, {rng(A[0], A[1], 4)}, {rng(B[0], B[1], 4)}, {ct}'
        return self.add(Op(t, 'mfma', dr, R(A[0], A[1], 4) + R(B[0], B[1], 4) + cr, cr))

    def raw(self, text, kind='other', defs=(), uses=(), **k):
        return self.add(Op(text, kind, defs, uses, **k))


V_L16 = 1
V_KD, V_VD = 2, 3
V_KA = 4
V_VA = 8
V_O = 16
V_Q = 112
V_S = 160
V_P = 208
V_NM = 232
V_T = 244
V_WA = V_P
V_XO = V_P + 4
V_XA = V_P + 6
V_WD = V_P + 8
V_OD = V_P + 12
V_OA = V_P + 16
A_X = 0
A_WR = 192; NWR = 12
A_WO = 240
A_KR = 0; NKR = 6
A_VR = 24; NVR = 6
A_L = 48
A_ONE = 60

S_X, S_WQ, S_K, S_V, S_WO, S_OD, S_WD = 8, 12, 16, 20, 24, 28, 32
S_XO, S_WQO = 40, 48
S_M0W, S_M0K, S_KVO, S_SC, S_4K, S_8K = 36, 37, 38, 39, 56, 57
S_M0X, S_XS = 61, 62
NXG = 6
WQE = NXG * 8192
WQO = WQE + 24576 + 8
S_B, S_H, S_ROT, S_W = 4, 5, 6, 3
S_FL, S_DB = 64, 68
S_WS, S_OS, S_OUT = 8, 12, 24
S_OSO, S_WSO, S_OUTO = 59, 60, 63
S_P0, S_P1 = 40, 41
V_WV = 250
V_FW, V_FP = 254, 255
BADA = 0


def srd(p, base, lo_src, off, nrec):
    if off is None:
        p.salu(f's_mov_b32 s{base}, s{lo_src}', [f's{base}'], [f's{lo_src}'])
        p.salu(f's_mov_b32 s{base+1}, s{lo_src+1}', [f's{base+1}'], [f's{lo_src+1}'])
    else:
        p.salu(f's_add_u32 s{base}, s{lo_src}, {off}', [f's{base}'], [f's{lo_src}', off])
        p.salu(f's_addc_u32 s{base+1}, s{lo_src+1}, 0', [f's{base+1}'], [f's{lo_src+1}', 'scc'])
    if isinstance(nrec, int):
        p.salu(f's_mov_b32 s{base+2}, {nrec}', [f's{base+2}'])
    else:
        p.salu(f's_sub_u32 s{base+2}, {nrec[0]}, {nrec[1]}', [f's{base+2}'], [nrec[1]])
    p.salu(f's_mov_b32 s{base+3}, 0x20000', [f's{base+3}'])


STG = [int(x) for x in E('STG', '0,96,240,372,624,1032,1190').split(',')]
NSTAMP = len(STG) + 5


def stamp(p, i, early=None):
    if STAMP:
        p.raw(f's_mem{"real" if STAMP != 2 else ""}time s[{80+2*i}:{81+2*i}]', 'salu', [f's{80+2*i}', f's{81+2*i}'], [],
              prio=10**6, early=early)


def k1_prologue(p):
    T = V_T
    p.raw('s_load_dwordx8 s[64:71], s[0:1], 0', 'salu', R('s', 64, 8))
    p.raw('s_load_dwordx8 s[72:79], s[0:1], 32', 'salu', R('s', 72, 8))
    V = p.valu
    if CODEPF:
        p.raw('s_getpc_b64 s[28:29]', 'salu', ['s28', 's29'])
        p.raw('L_pc:', 'label')
        p.salu('s_mov_b32 s30, L_codeend - L_pc', ['s30'])
        p.salu('s_mov_b32 s31, 0x20000', ['s31'])
        V(f'v_lshlrev_b32 v{T+4}, 7, v0', [f'v{T+4}'], ['v0'])
        for i in range(CODEPF):
            if i:
                V(f'v_add_u32 v{T+4}, 32768, v{T+4}', [f'v{T+4}'], [f'v{T+4}'])
            p.raw(f'buffer_load_dword v{V_S+1+i}, v{T+4}, s[28:31], 0 offen', 'vml', [f'v{V_S+1+i}', 'VMORD:'], [f'v{T+4}'] + R('s', 28, 4))
    V(f'v_lshrrev_b32 v{T}, 6, v0', [f'v{T}'], ['v0'])
    V(f'v_and_b32 v{T+1}, 63, v0', [f'v{T+1}'], ['v0'])
    V(f'v_readfirstlane_b32 s{S_W}, v{T}', [f's{S_W}'], [f'v{T}'])
    V(f'v_lshrrev_b32 v{T+2}, 4, v{T+1}', [f'v{T+2}'], [f'v{T+1}'])
    V(f'v_and_b32 v{T+3}, 15, v0', [f'v{T+3}'], ['v0'])
    V(f'v_lshlrev_b32 v{V_L16}, 4, v{T+1}', [f'v{V_L16}'], [f'v{T+1}'])
    p.salu('s_and_b32 s7, s2, 7', ['s7'], ['s2'])
    p.salu(f's_lshl_b32 s{S_H}, s7, 2', [f's{S_H}'], ['s7'])
    p.salu('s_bfe_u32 s58, s2, 0x20003', ['s58'], ['s2'])
    p.salu(f's_add_u32 s{S_H}, s{S_H}, s58', [f's{S_H}'], [f's{S_H}', 's58'])
    p.salu(f's_lshr_b32 s{S_B}, s2, 5', [f's{S_B}'], ['s2'])
    if ROT:
        p.salu(f's_lshl_b32 s58, s58, 1', ['s58'], ['s58'])
        p.salu(f's_add_u32 s{S_ROT}, s58, s{S_B}', [f's{S_ROT}'], ['s58', f's{S_B}'])
    else:
        p.salu(f's_mov_b32 s{S_ROT}, 0', [f's{S_ROT}'])
    if ROT == -1:
        p.salu(f's_and_b32 s{S_ROT}, s2, 7', [f's{S_ROT}'], ['s2'])
    if ROT >= 2:
        p.salu(f's_lshr_b32 s58, s58, 1', ['s58'], ['s58'])
        p.salu(f's_xor_b32 s{S_ROT}, s58, s{S_B}', [f's{S_ROT}'], ['s58', f's{S_B}'])
        p.salu(f's_and_b32 s{S_ROT}, s{S_ROT}, {ROT-1}', [f's{S_ROT}'], [f's{S_ROT}'])
    for i in range(8):
        if ROT >= 2:
            p.salu(f's_xor_b32 s{S_XO+i}, s{S_ROT}, {i}', [f's{S_XO+i}'], [f's{S_ROT}'])
        else:
            p.salu(f's_add_u32 s{S_XO+i}, s{S_ROT}, {i}', [f's{S_XO+i}'], [f's{S_ROT}'])
            p.salu(f's_and_b32 s{S_XO+i}, s{S_XO+i}, 7', [f's{S_XO+i}'], [f's{S_XO+i}'])
        p.salu(f's_lshl_b32 s{S_WQO+i}, s{S_XO+i}, 19', [f's{S_WQO+i}'], [f's{S_XO+i}'])
        p.salu(f's_lshl_b32 s{S_XO+i}, s{S_XO+i}, 7', [f's{S_XO+i}'], [f's{S_XO+i}'])
    p.salu(f's_lshl_b32 s{S_M0W}, s{S_W}, 11', [f's{S_M0W}'], [f's{S_W}'])
    p.salu(f's_lshl_b32 s{S_M0K}, s{S_W}, 12', [f's{S_M0K}'], [f's{S_W}'])
    p.salu(f's_mul_i32 s{S_M0X}, s{S_W}, {NXG*2048}', [f's{S_M0X}'], [f's{S_W}'])
    p.salu(f's_lshl_b32 s7, s{S_W}, 17', ['s7'], [f's{S_W}'])
    V(f'v_lshlrev_b32 v{T+4}, 2, v{T+2}', [f'v{T+4}'], [f'v{T+2}'])
    V(f'v_xor_b32 v{T+4}, v{T+4}, v{T+3}', [f'v{T+4}'], [f'v{T+4}', f'v{T+3}'])
    V(f'v_lshlrev_b32 v{T+4}, 4, v{T+4}', [f'v{T+4}'], [f'v{T+4}'])
    V(f'v_lshl_add_u32 v{T+4}, v{T+2}, 13, v{T+4}', [f'v{T+4}'], [f'v{T+4}', f'v{T+2}'])
    V(f'v_add_u32 v{V_WD}, s7, v{T+4}', [f'v{V_WD}'], [f'v{T+4}', 's7'])
    for j in range(1, 4):
        V(f'v_add_u32 v{V_WD+j}, {j*32768 - (j&1)*1024}, v{V_WD}', [f'v{V_WD+j}'], [f'v{V_WD}'])
    p.salu(f's_mul_i32 s58, s{S_W}, 49152', ['s58'], [f's{S_W}'])
    V(f'v_and_b32 v{T+5}, 7, v0', [f'v{T+5}'], ['v0'])
    V(f'v_xor_b32 v{T+5}, v{T+5}, v{T+2}', [f'v{T+5}'], [f'v{T+5}', f'v{T+2}'])
    V(f'v_lshlrev_b32 v{T+5}, 4, v{T+5}', [f'v{T+5}'], [f'v{T+5}'])
    V(f'v_bfe_u32 v{T+6}, v0, 3, 3', [f'v{T+6}'], ['v0'])
    V(f'v_lshl_add_u32 v{T+5}, v{T+6}, 10, v{T+5}', [f'v{T+5}'], [f'v{T+5}', f'v{T+6}'])
    V(f'v_add_u32 v{V_XO}, s58, v{T+5}', [f'v{V_XO}'], [f'v{T+5}', 's58'])
    V(f'v_xor_b32 v{V_XO+1}, 64, v{V_XO}', [f'v{V_XO+1}'], [f'v{V_XO}'])
    V(f'v_add_u32 v{V_XO+1}, 7168, v{V_XO+1}', [f'v{V_XO+1}'], [f'v{V_XO+1}'])
    p.raw('s_waitcnt lgkmcnt(0)', 'wait', [], R('s', 64, 16))
    p.salu(f's_lshl_b32 s7, s{S_H}, 8', ['s7'], [f's{S_H}'])
    srd(p, S_WQ, 70, 's7', ('0x400000', 's7'))
    p.salu(f's_mul_i32 s7, s{S_B}, 196608', ['s7'], [f's{S_B}'])
    srd(p, S_X, 64, 's7', 196608)


def k1_prologue2(p):
    T = V_T
    V = p.valu
    p.salu(f's_lshl_b32 s7, s{S_B}, 5', ['s7'], [f's{S_B}'])
    p.salu(f's_add_u32 s7, s7, s{S_H}', ['s7'], ['s7', f's{S_H}'])
    p.salu('s_lshl_b32 s7, s7, 17', ['s7'], ['s7'])
    srd(p, S_K, 66, 's7', 131072)
    srd(p, S_V, 68, 's7', 131072)
    p.salu(f's_lshl_b32 s58, s{S_W}, 2', ['s58'], [f's{S_W}'])
    V(f'v_add_u32 v{T+4}, s58, v{T+2}', [f'v{T+4}'], [f'v{T+2}', 's58'])
    V(f'v_xor_b32 v{T+4}, v{T+4}, v{T+3}', [f'v{T+4}'], [f'v{T+4}', f'v{T+3}'])
    V(f'v_lshlrev_b32 v{T+5}, 8, v{T+2}', [f'v{T+5}'], [f'v{T+2}'])
    V(f'v_add_u32 v{T+5}, s{S_M0K}, v{T+5}', [f'v{T+5}'], [f'v{T+5}', f's{S_M0K}'])
    V(f'v_lshl_add_u32 v{V_KD}, v{T+4}, 4, v{T+5}', [f'v{V_KD}'], [f'v{T+4}', f'v{T+5}'])
    p.salu(f's_and_b32 s58, s{S_W}, 1', ['s58'], [f's{S_W}'])
    p.salu('s_lshl_b32 s58, s58, 2', ['s58'], ['s58'])
    V(f'v_add_u32 v{T+4}, s58, v{T+2}', [f'v{T+4}'], [f'v{T+2}', 's58'])
    V(f'v_lshlrev_b32 v{T+4}, 1, v{T+4}', [f'v{T+4}'], [f'v{T+4}'])
    V(f'v_xor_b32 v{T+4}, v{T+4}, v{T+3}', [f'v{T+4}'], [f'v{T+4}', f'v{T+3}'])
    V(f'v_lshl_add_u32 v{V_VD}, v{T+4}, 4, v{T+5}', [f'v{V_VD}'], [f'v{T+4}', f'v{T+5}'])
    V(f'v_bfe_u32 v{T+6}, v0, 2, 2', [f'v{T+6}'], ['v0'])
    V(f'v_and_b32 v{T+7}, 3, v0', [f'v{T+7}'], ['v0'])
    V(f'v_and_b32 v{T+8}, 1, v{T+2}', [f'v{T+8}'], [f'v{T+2}'])
    V(f'v_lshrrev_b32 v{T+4}, 1, v{T+3}', [f'v{T+4}'], [f'v{T+3}'])
    V(f'v_xor_b32 v{T+4}, v{T+4}, v{T+2}', [f'v{T+4}'], [f'v{T+4}', f'v{T+2}'])
    V(f'v_lshlrev_b32 v{T+4}, 4, v{T+4}', [f'v{T+4}'], [f'v{T+4}'])
    V(f'v_lshl_add_u32 v{T+4}, v{T+3}, 7, v{T+4}', [f'v{T+4}'], [f'v{T+4}', f'v{T+3}'])
    V(f'v_add_u32 v{V_XA}, s{S_M0X}, v{T+4}', [f'v{V_XA}'], [f'v{T+4}', f's{S_M0X}'])
    V(f'v_xor_b32 v{V_XA+1}, 64, v{V_XA}', [f'v{V_XA+1}'], [f'v{V_XA}'])
    V(f'v_lshrrev_b32 v{T+4}, 1, v{T+2}', [f'v{T+4}'], [f'v{T+2}'])
    V(f'v_lshlrev_b32 v{T+4}, 11, v{T+4}', [f'v{T+4}'], [f'v{T+4}'])
    V(f'v_mul_u32_u24 v{T+5}, {WQO-WQE}, v{T+8}', [f'v{T+5}'], [f'v{T+8}'])
    V(f'v_add_u32 v{T+4}, v{T+4}, v{T+5}', [f'v{T+4}'], [f'v{T+4}', f'v{T+5}'])
    V(f'v_add_u32 v{T+4}, {WQE}, v{T+4}', [f'v{T+4}'], [f'v{T+4}'])
    V(f'v_lshl_add_u32 v{T+4}, v{T+6}, 8, v{T+4}', [f'v{T+4}'], [f'v{T+4}', f'v{T+6}'])
    V(f'v_lshl_add_u32 v{T+4}, v{T+7}, 4, v{T+4}', [f'v{T+4}'], [f'v{T+4}', f'v{T+7}'])
    for ks in range(4):
        V(f'v_xor_b32 v{T+5}, {ks}, v{T+6}', [f'v{T+5}'], [f'v{T+6}'])
        V(f'v_lshl_add_u32 v{V_WA+ks}, v{T+5}, 6, v{T+4}', [f'v{V_WA+ks}'], [f'v{T+5}', f'v{T+4}'])


def k1_prologue3(p, kslot0, vslot0):
    T = V_T
    V = p.valu
    V(f'v_lshlrev_b32 v{T+4}, 8, v{T+7}', [f'v{T+4}'], [f'v{T+7}'])
    V(f'v_lshl_add_u32 v{T+4}, v{T+6}, 12, v{T+4}', [f'v{T+4}'], [f'v{T+4}', f'v{T+6}'])
    V(f'v_add_u32 v{T+4}, {kslot0*16384}, v{T+4}', [f'v{T+4}'], [f'v{T+4}'])
    for ks in range(4):
        V(f'v_add_u32 v{T+5}, {4*ks}, v{T+2}', [f'v{T+5}'], [f'v{T+2}'])
        V(f'v_xor_b32 v{T+5}, v{T+5}, v{T+3}', [f'v{T+5}'], [f'v{T+5}', f'v{T+3}'])
        V(f'v_lshl_add_u32 v{V_KA+ks}, v{T+5}, 4, v{T+4}', [f'v{V_KA+ks}'], [f'v{T+5}', f'v{T+4}'])
    V(f'v_lshlrev_b32 v{T+4}, 12, v{T+2}', [f'v{T+4}'], [f'v{T+2}'])
    V(f'v_lshl_add_u32 v{T+4}, v{T+6}, 8, v{T+4}', [f'v{T+4}'], [f'v{T+4}', f'v{T+6}'])
    V(f'v_and_b32 v{T+5}, 1, v0', [f'v{T+5}'], ['v0'])
    V(f'v_lshl_add_u32 v{T+4}, v{T+5}, 3, v{T+4}', [f'v{T+4}'], [f'v{T+4}', f'v{T+5}'])
    V(f'v_add_u32 v{T+4}, {vslot0*16384}, v{T+4}', [f'v{T+4}'], [f'v{T+4}'])
    V(f'v_lshl_add_u32 v{T+9}, v{T+8}, 2, v{T+6}', [f'v{T+9}'], [f'v{T+8}', f'v{T+6}'])
    V(f'v_lshlrev_b32 v{T+9}, 1, v{T+9}', [f'v{T+9}'], [f'v{T+9}'])
    V(f'v_bfe_u32 v{T+10}, v0, 1, 1', [f'v{T+10}'], ['v0'])
    V(f'v_or_b32 v{T+9}, v{T+9}, v{T+10}', [f'v{T+9}'], [f'v{T+9}', f'v{T+10}'])
    for dt in range(8):
        V(f'v_xor_b32 v{T+5}, {2*dt}, v{T+9}', [f'v{T+5}'], [f'v{T+9}'])
        V(f'v_lshl_add_u32 v{V_VA+dt}, v{T+5}, 4, v{T+4}', [f'v{V_VA+dt}'], [f'v{T+5}', f'v{T+4}'])
    V(f'v_bfe_u32 v{T+4}, v0, 3, 3', [f'v{T+4}'], ['v0'])
    V(f'v_and_b32 v{T+5}, 7, v0', [f'v{T+5}'], ['v0'])
    V(f'v_lshlrev_b32 v{T+11}, 1, v{T+2}', [f'v{T+11}'], [f'v{T+2}'])
    V(f'v_xor_b32 v{T+5}, v{T+5}, v{T+11}', [f'v{T+5}'], [f'v{T+5}', f'v{T+11}'])
    V(f'v_lshlrev_b32 v{T+5}, 4, v{T+5}', [f'v{T+5}'], [f'v{T+5}'])
    V(f'v_lshl_add_u32 v{V_OD}, v{T+4}, 10, v{T+5}', [f'v{V_OD}'], [f'v{T+4}', f'v{T+5}'])
    for j in range(1, 4):
        V(f'v_add_u32 v{V_OD+j}, {j*7168}, v{V_OD}', [f'v{V_OD+j}'], [f'v{V_OD}'])
    V(f'v_lshl_add_u32 v{T+4}, v{T+2}, 2, v{T+6}', [f'v{T+4}'], [f'v{T+2}', f'v{T+6}'])
    V(f'v_and_b32 v{T+5}, 6, v{T+4}', [f'v{T+5}'], [f'v{T+4}'])
    V(f'v_or_b32 v{T+5}, v{T+5}, v{T+10}', [f'v{T+5}'], [f'v{T+5}', f'v{T+10}'])
    V(f'v_lshlrev_b32 v{T+4}, 7, v{T+4}', [f'v{T+4}'], [f'v{T+4}'])
    V(f'v_and_b32 v{T+11}, 1, v0', [f'v{T+11}'], ['v0'])
    V(f'v_lshl_add_u32 v{T+4}, v{T+11}, 3, v{T+4}', [f'v{T+4}'], [f'v{T+4}', f'v{T+11}'])
    V(f'v_add_u32 v{T+4}, s{S_M0K}, v{T+4}', [f'v{T+4}'], [f'v{T+4}', f's{S_M0K}'])
    V(f'v_add_u32 v{T+4}, {WOSLOT*16384}, v{T+4}', [f'v{T+4}'], [f'v{T+4}'])
    for n4 in range(4):
        V(f'v_xor_b32 v{T+11}, {2*n4}, v{T+5}', [f'v{T+11}'], [f'v{T+5}'])
        V(f'v_lshl_add_u32 v{V_OA+n4}, v{T+11}, 4, v{T+4}', [f'v{V_OA+n4}'], [f'v{T+11}', f'v{T+4}'])
    p.salu('s_lshr_b32 s58, s2, 3', ['s58'], ['s2'])
    p.salu('s_lshl_b32 s58, s58, 2', ['s58'], ['s58'])
    p.salu(f's_add_u32 s58, s58, s{S_W}', ['s58'], ['s58', f's{S_W}'])
    p.salu('s_and_b32 s59, s2, 7', ['s59'], ['s2'])
    p.salu('s_lshl_b32 s7, s58, 15', ['s7'], ['s58'])
    p.salu('s_lshl_b32 s60, s59, 7', ['s60'], ['s59'])
    p.salu('s_add_u32 s7, s7, s60', ['s7'], ['s7', 's60'])
    srd(p, S_WO, 72, 's7', ('0x400000', 's7'))
    p.salu('s_add_u32 s7, s60, s58', ['s7'], ['s60', 's58'])
    p.salu('s_lshl_b32 s7, s7, 12', ['s7'], ['s7'])
    p.salu(f's_add_u32 s7, s7, {WOFF}', ['s7'], ['s7'])
    srd(p, S_WD, 78, 's7', 4096)
    p.salu(f's_lshl_b32 s7, s{S_B}, 2', ['s7'], [f's{S_B}'])
    p.salu(f's_add_u32 s7, s7, s{S_W}', ['s7'], ['s7', f's{S_W}'])
    p.salu('s_lshl_b32 s7, s7, 5', ['s7'], ['s7'])
    p.salu(f's_add_u32 s7, s7, s{S_H}', ['s7'], ['s7', f's{S_H}'])
    p.salu('s_mul_i32 s7, s7, 12288', ['s7'], ['s7'])
    p.salu(f's_add_u32 s7, s7, {OOFF}', ['s7'], ['s7'])
    srd(p, S_OD, 78, 's7', 12288)
    p.salu(f's_lshl_b32 s7, s{S_B}, 2', ['s7'], [f's{S_B}'])
    p.salu(f's_add_u32 s7, s7, s{S_W}', ['s7'], ['s7', f's{S_W}'])
    p.salu('s_lshl_b32 s7, s7, 5', ['s7'], ['s7'])
    p.salu(f's_add_u32 s7, s7, s{S_H}', ['s7'], ['s7', f's{S_H}'])
    p.salu('s_lshl_b32 s7, s7, 7', ['s7'], ['s7'])
    V(f'v_lshl_add_u32 v{V_FW}, v{T+1}, 20, s7', [f'v{V_FW}'], [f'v{T+1}', 's7'])
    p.salu(f's_mov_b32 s7, {FOFF}', ['s7'])
    srd(p, S_FL, 78, 's7', 131072)
    srd(p, S_DB, 76, None, 256)
    p.salu('s_and_b32 s58, s2, 6', ['s58'], ['s2'])
    p.salu('s_bfe_u32 s7, s2, 0x10003', ['s7'], ['s2'])
    p.salu('s_add_u32 s58, s58, s7', ['s58'], ['s58', 's7'])
    p.salu('s_lshl_b32 s58, s58, 2', ['s58'], ['s58'])
    p.salu('s_bfe_u32 s7, s2, 0x20004', ['s7'], ['s2'])
    p.salu('s_add_u32 s58, s58, s7', ['s58'], ['s58', 's7'])
    p.salu(f's_mul_i32 s{S_OUTO}, s58, 49152', [f's{S_OUTO}'], ['s58'])
    p.salu('s_lshl_b32 s58, s58, 2', ['s58'], ['s58'])
    p.salu(f's_add_u32 s58, s58, s{S_W}', ['s58'], ['s58', f's{S_W}'])
    p.salu(f's_mul_i32 s{S_OSO}, s58, 98304', [f's{S_OSO}'], ['s58'])
    p.salu(f's_add_u32 s{S_OSO}, s{S_OSO}, {OOFF}', [f's{S_OSO}'], [f's{S_OSO}'])
    p.salu('s_lshl_b32 s58, s58, 10', ['s58'], ['s58'])
    V(f'v_lshrrev_b32 v{T+4}, 3, v{T+1}', [f'v{T+4}'], [f'v{T+1}'])
    V(f'v_lshl_add_u32 v{T+4}, v{T+4}, 20, s58', [f'v{T+4}'], [f'v{T+4}', 's58'])
    V(f'v_lshl_add_u32 v{V_FP}, v{T+1}, 7, v{T+4}', [f'v{V_FP}'], [f'v{T+1}', f'v{T+4}'])
    p.salu('s_and_b32 s58, s2, 1', ['s58'], ['s2'])
    p.salu('s_lshl_b32 s58, s58, 2', ['s58'], ['s58'])
    p.salu('s_lshr_b32 s7, s2, 6', ['s7'], ['s2'])
    p.salu('s_add_u32 s58, s58, s7', ['s58'], ['s58', 's7'])
    p.salu('s_lshl_b32 s58, s58, 2', ['s58'], ['s58'])
    p.salu(f's_add_u32 s58, s58, s{S_W}', ['s58'], ['s58', f's{S_W}'])
    p.salu(f's_lshl_b32 s{S_WSO}, s58, 17', [f's{S_WSO}'], ['s58'])
    p.salu(f's_add_u32 s{S_WSO}, s{S_WSO}, {WOFF}', [f's{S_WSO}'], [f's{S_WSO}'])
    p.salu('s_lshl_b32 s58, s58, 5', ['s58'], ['s58'])
    p.salu(f's_add_u32 s{S_OUTO}, s{S_OUTO}, s58', [f's{S_OUTO}'], [f's{S_OUTO}', 's58'])
    for n in range(4):
        p.salu(f's_add_u32 s7, s{S_W}, {n}', ['s7'], [f's{S_W}'])
        p.salu('s_and_b32 s7, s7, 3', ['s7'], ['s7'])
        p.salu('s_lshl_b32 s7, s7, 10', ['s7'], ['s7'])
        V(f'v_add_u32 v{V_WV+n}, s7, v{V_L16}', [f'v{V_WV+n}'], ['s7', f'v{V_L16}'])
    V(f'v_mov_b32 v{T+4}, 0', [f'v{T+4}'])
    p.raw(f'buffer_store_dword v{T+4}, v{V_FW}, {s(S_FL,4)}, 0 offen sc1', 'vms', ['VMORD:'], [f'v{T+4}', f'v{V_FW}'] + R('s', S_FL, 4))
    p.salu(f's_mov_b32 s{S_SC}, {SCALE:#x}', [f's{S_SC}'])
    p.salu(f's_mov_b32 s{S_4K}, 4096', [f's{S_4K}'])
    p.salu(f's_mov_b32 s{S_8K}, 8192', [f's{S_8K}'])


HP = 10 ** 5


def dma_wq(p, pos, half, free=None, early=None):
    u = [free] if free else []
    k = dict(prio=HP, early=None if early is None else early - 1)
    p.salu(f's_add_u32 m0, s{S_M0W}, {(WQO if half else WQE) + (pos % 3) * 8192}', ['m0'], [f's{S_M0W}'] + u, **k)
    for j in range(2):
        p.raw(f'buffer_load_dwordx4 v{V_WD+2*half+j}, {s(S_WQ,4)}, s{S_WQO+pos} offen offset:{j*1024}{WQF} lds', 'dma',
              [f'D:wq{pos}', 'VMORD:'], [f'v{V_WD+2*half+j}', 'm0', f's{S_WQO+pos}'] + R('s', S_WQ, 4) + u, prio=HP, early=early)


def dma_x(p, gi, early=None):
    pos, t = divmod(gi, 3)
    u = [f'R:x{gi-NXG}'] if gi >= NXG else []
    k = dict(prio=HP, early=None if early is None else early - 2)
    p.salu(f's_add_u32 m0, s{S_M0X}, {(gi % NXG) * 2048}', ['m0'], [f's{S_M0X}'], **k)
    p.salu(f's_add_u32 s{S_XS}, s{S_XO+pos}, {t*16384}', [f's{S_XS}'], [f's{S_XO+pos}'], **k)
    for j in range(2):
        p.raw(f'buffer_load_dwordx4 v{V_XO+j}, {s(S_X,4)}, s{S_XS} offen offset:{j*1024}{XF} lds', 'dma',
              [f'D:x{gi}', 'VMORD:'], [f'v{V_XO+j}', 'm0', f's{S_XS}'] + R('s', S_X, 4) + u, prio=HP, early=early)


def read_x(p, gi, early=None):
    pos, t = divmod(gi, 3)
    for e in range(2):
        d = A_X + (pos * 6 + e * 3 + t) * 4
        p.raw(f'ds_read_b128 {a(d,4)}, v{V_XA+e} offset:{(gi % NXG) * 2048}', 'ds', R('a', d, 4) + [f'R:x{gi}', 'R:xall'],
              [f'v{V_XA+e}', f'D:x{gi}'], prio=HP, early=early)


def dma_kv(p, which, J, slot, free=None, pieces=(0, 1, 2, 3), early=None, step=0, setm0=True):
    S, vo = (S_K, V_KD) if which == 'K' else (S_V, V_VD)
    assert free is None or any(free in o.defs for o in p.ops), (which, J, free)
    u = [free] if free else []
    k = dict(prio=HP, early=None if early is None else early - 2)
    if setm0:
        p.salu(f's_add_u32 m0, s{S_M0K}, {slot*16384}', ['m0'], [f's{S_M0K}'] + u, **k)
    if pieces[0] == 0:
        p.salu(f's_mov_b32 s{S_KVO}, {J*16384}', [f's{S_KVO}'], u, **k)
    for n, j in enumerate(pieces):
        p.raw(f'buffer_load_dwordx4 v{vo}, {s(S,4)}, s{S_KVO} offen offset:{j*1024}{KVF} lds', 'dma',
              [f'D:{which}{J}', 'VMORD:'], [f'v{vo}', 'm0', f's{S_KVO}'] + R('s', S, 4) + u, prio=HP,
              early=None if early is None else int(early + n * step))


def dma_wo(p, pieces, early=None):
    p.salu(f's_add_u32 m0, s{S_M0K}, {WOSLOT*16384}', ['m0'], [f's{S_M0K}'], prio=HP, early=None if early is None else early - 1)
    for j in pieces:
        p.raw(f'buffer_load_dwordx4 v{V_OD+j}, {s(S_WO,4)}, 0 offen offset:{j*1024}{WOF} lds', 'dma',
              ['D:wo', 'VMORD:'], [f'v{V_OD+j}', 'm0'] + R('s', S_WO, 4), prio=HP, early=early)


def barrier(p, uses, defs, **k):
    return p.raw('s_barrier', 'bar', list(defs) + ['BARORD:'], list(uses), **k)


def qacc(ks, b2, t): return V_O + ((ks * 2 + b2) * 3 + t) * 4
def oacc(dt, t): return V_O + (dt * 3 + t) * 4
def qfrag(ks, t): return V_Q + (ks * 3 + t) * 4
def sreg(st, u, t): return V_S + (st & 1) * 24 + (u * 3 + t) * 4
def preg(st, t): return V_P + (st & 1) * 12 + t * 4


KSLOT = [8, 7, 1, 6, 4, 8, 7, 1]
VSLOT = [9, 0, 2, 3, 5, 9, 0, 2]
KBASE = [7, 7, 1, 4, 4, 7, 7, 1]
VBASE = [6, 0, 0, 0, 5, 6, 0, 0]
WOSLOT = 7


def k1_main(p):
    DSWIN = int(E('DSWIN', 12))
    WQWIN = int(E('WQWIN', 27))
    wr = [0]

    def wq_frag(pos, e, ks, b2):
        d = A_WR + (wr[0] % NWR) * 4
        wr[0] += 1
        for m in range(2):
            off = (pos % 3) * 8192 + e * 4096 + m * 1024 + 8 * b2
            p.raw(f'ds_read_b64_tr_b16 {a(d+2*m,2)}, v{V_WA+ks} offset:{off}', 'ds',
                  R('a', d + 2 * m, 2) + [f'R:wq{pos}'], [f'v{V_WA+ks}', f'L:wq{pos}'], win=WQWIN - sched.DS_LAT)
        return d

    def q_mfmas(pos, e, ks, b2):
        d = wq_frag(pos, e, ks, b2)
        for t in range(3):
            acc = qacc(ks, b2, t)
            first = pos == 0 and e == 0
            p.mfma(('v', acc), ('a', d), ('a', A_X + (pos * 6 + e * 3 + t) * 4), None if first else ('v', acc))

    def convert_q(ks):
        for t in range(3):
            for b2 in range(2):
                r0 = qacc(ks, b2, t)
                for i in range(4):
                    p.valu(f'v_mul_f32 v{r0+i}, s{S_SC}, v{r0+i}', [f'v{r0+i}'], [f'v{r0+i}', f's{S_SC}'])
                for h2 in range(2):
                    d = qfrag(ks, t) + 2 * b2 + h2
                    p.valu(f'v_cvt_pk_bf16_f32 v{d}, v{r0+2*h2}, v{r0+2*h2+1}', [f'v{d}'], R('v', r0 + 2 * h2, 2))

    def wo_publish(early):
        for n4 in range(4):
            for m in range(2):
                d = A_WO + n4 * 4 + 2 * m
                p.raw(f'ds_read_b64_tr_b16 {a(d,2)}, v{V_OA+n4} offset:{m*2048}', 'ds',
                      R('a', d, 2) + ['R:wo'], [f'v{V_OA+n4}', 'D:wo'], early=early, prio=HP // 2)

    def wo_store(early, n4):
        d = A_WO + n4 * 4
        p.raw(f'buffer_store_dwordx4 {a(d,4)}, v{V_L16}, {s(S_WD,4)}, 0 offen offset:{n4*1024}{STF}', 'vms',
              ['VMORD:', 'D:wost'], R('a', d, 4) + [f'v{V_L16}'] + R('s', S_WD, 4), early=early, prio=HP)

    ev = []
    XL = int(E('XLEAD', 40))
    XP = float(E('XPACE', 12))
    xr = lambda gi: -10 if gi < 3 else max(min(16 * gi - XL, int(XP * gi + float(E('XOFS', 0)))), int(E('XR0', 28)) + 5 * (gi - 3))
    for gi in range(3, 24):
        ev.append((xr(gi), 0, lambda g, gi=gi: read_x(p, gi, g)))
    for gi in range(NPREX, 24):
        g0 = 1 + 5 * (gi - NPREX)
        if gi >= NXG:
            g0 = max(g0, xr(gi - NXG) + 9)
        ev.append((g0, 1, lambda g, gi=gi: dma_x(p, gi, g)))
    if NPREW < 3:
        ev.append((3, 1, lambda g: dma_wq(p, 2, 0, None, g)))
        ev.append((8, 1, lambda g: dma_wq(p, 2, 1, None, g)))
    for pos in range(3, 8):
        for half in range(2):
            ev.append((48 * (pos - 3) + 28 + 14 * half, 1, lambda g, pos=pos, half=half: dma_wq(p, pos, half, f'F:q{pos-2}', g)))
    G0, G1 = int(E('AG0', 215)), int(E('AG1', 1050))
    tiles = [('V', 0, None), ('K', 1, f'F:q{WOREL}'), ('V', 1, f'F:q{XREL}'), ('K', 2, f'F:q{XREL}'), ('V', 2, f'F:q{XREL}'),
             ('K', 3, 'F:q6'), ('V', 3, 'F:qe'), ('K', 4, 'F:qe'), ('V', 4, 'F:qe'),
             ('K', 5, 'F:a1'), ('V', 5, 'F:a1'), ('K', 6, 'F:a2'), ('V', 6, 'F:a2'), ('K', 7, 'F:a3'), ('V', 7, 'F:a3')]
    stp = (G1 - G0) / (4.0 * len(tiles))
    rest = []
    for n, (w_, J, fr) in enumerate(tiles):
        g0 = G0 + 4 * n * stp
        if g0 + 3 * stp < 360:
            for j0 in (0, 2):
                gq = int(g0 + j0 * stp)
                if fr:
                    gq = max(gq, 48 * (int(fr[3]) - 1) + 24 + j0)
                ev.append((gq, 1, lambda g, w_=w_, J=J, j0=j0, fr=fr: dma_kv(p, w_, J, (KSLOT if w_ == 'K' else VSLOT)[J], fr, (j0, j0 + 1), g)))
        else:
            rest.append((g0, (w_, J, fr)))
    for nm, dflt in (('WO', 44), ('K0', 20)):
        g0 = int(E(nm + 'G', dflt))
        if g0 >= 0:
            for j0 in (0, 2):
                if nm == 'WO':
                    ev.append((g0 + 6 * j0, 1, lambda g, j0=j0: dma_wo(p, (j0, j0 + 1), g)))
                else:
                    ev.append((g0 + 6 * j0, 1, lambda g, j0=j0: dma_kv(p, 'K', 0, KSLOT[0], None, (j0, j0 + 1), g)))
    ev.append((int(E('WORD', 150)), 2, wo_publish))
    for n4 in range(4):
        ev.append((int(E('WOST', 290)) + 4 * n4, 1, lambda g, n4=n4: wo_store(g, n4)))
    ev.sort(key=lambda t: t[:2])

    def flush(upto):
        while ev and ev[0][0] < upto:
            g, _, f = ev.pop(0)
            f(g)

    for pos in range(8):
        uses = [f'D:wq{pos}']
        if pos >= 1:
            uses.append(f'R:wq{pos-1}')
        if pos == WOREL:
            uses.append('R:wo')
        if pos == XREL:
            uses.append('R:xall')
        barrier(p, uses, [f'L:wq{pos}', f'F:q{pos}'], win=WQWIN - sched.DS_LAT + 1)
        if pos == 0:
            for i_, g_ in enumerate(STG): stamp(p, 1 + i_, g_)
            for gi in range(3):
                read_x(p, gi)
        flush(48 * pos + 24)
        if pos < 7:
            for e in range(2):
                for ks in range(4):
                    for b2 in range(2):
                        q_mfmas(pos, e, ks, b2)
        else:
            for ks in range(4):
                for e in range(2):
                    for b2 in range(2):
                        q_mfmas(pos, e, ks, b2)
                convert_q(ks)
    p.valu(f'v_mov_b32 v{V_T+4}, 0x3f803f80', [f'v{V_T+4}'])
    for i in range(4):
        p.valu(f'v_accvgpr_write_b32 a{A_ONE+i}, v{V_T+4}', [f'a{A_ONE+i}'], [f'v{V_T+4}'])
    if not FT:
        for i in range(12):
            p.valu(f'v_mov_b32 v{V_NM+i}, 0', [f'v{V_NM+i}'])

    kr = [0]
    vr = [0]
    kbase = [KBASE[0]]
    vbase = [VBASE[0]]

    def k_frag(st, u, ks):
        J = st >> 1
        sl = KSLOT[J]
        if KBASE[J] != kbase[0]:
            dlt = (KBASE[J] - kbase[0]) * 16384
            kbase[0] = KBASE[J]
            for k2 in range(4):
                p.valu(f'v_add_u32 v{V_KA+k2}, {dlt}, v{V_KA+k2}', [f'v{V_KA+k2}'], [f'v{V_KA+k2}'])
        d = A_KR + (kr[0] % NKR) * 4
        kr[0] += 1
        off = (sl - kbase[0]) * 16384 + (2 * (st & 1) + u) * 1024
        p.raw(f'ds_read_b128 {a(d,4)}, v{V_KA+ks} offset:{off}', 'ds',
              R('a', d, 4) + [f'R:K{J}'], [f'v{V_KA+ks}', f'L:K{J}'], win=DSWIN)
        return d

    def v_frag(st, dt):
        J = st >> 1
        sl = VSLOT[J]
        if VBASE[J] != vbase[0]:
            dlt = (VBASE[J] - vbase[0]) * 16384
            vbase[0] = VBASE[J]
            for k2 in range(8):
                p.valu(f'v_add_u32 v{V_VA+k2}, {dlt}, v{V_VA+k2}', [f'v{V_VA+k2}'], [f'v{V_VA+k2}'])
        d = A_VR + (vr[0] % NVR) * 4
        vr[0] += 1
        for m in range(2):
            off = (sl - vbase[0]) * 16384 + (st & 1) * 2048 + m * 1024
            p.raw(f'ds_read_b64_tr_b16 {a(d+2*m,2)}, v{V_VA+dt} offset:{off}', 'ds',
                  R('a', d + 2 * m, 2) + [f'R:V{J}'], [f'v{V_VA+dt}', f'L:V{J}'], win=DSWIN)
        return d

    def qk(st):
        order = [(u, ks) for ks in range(4) for u in range(2)] if st == 0 else [(u, ks) for u in range(2) for ks in range(4)]
        for u, ks in order:
            d = k_frag(st, u, ks)
            for t in range(3):
                r0 = sreg(st, u, t)
                if ks == 0:
                    c = None if (FT and st <= 1) else ('v', V_NM + 4 * t)
                else:
                    c = ('v', r0)
                p.mfma(('v', r0), ('a', d), ('v', qfrag(ks, t)), c)

    def first_max():
        T = V_T
        for t in range(3):
            rs = [sreg(0, u, t) + i for u in range(2) for i in range(4)]
            m, x = T + 2 * t, T + 2 * t + 1
            p.valu(f'v_max3_f32 v{m}, v{rs[0]}, v{rs[1]}, v{rs[2]}', [f'v{m}'], [f'v{r}' for r in rs[:3]])
            p.valu(f'v_max3_f32 v{m}, v{m}, v{rs[3]}, v{rs[4]}', [f'v{m}'], [f'v{m}'] + [f'v{r}' for r in rs[3:5]])
            p.valu(f'v_max3_f32 v{m}, v{m}, v{rs[5]}, v{rs[6]}', [f'v{m}'], [f'v{m}'] + [f'v{r}' for r in rs[5:7]])
            p.valu(f'v_max_f32 v{m}, v{m}, v{rs[7]}', [f'v{m}'], [f'v{m}', f'v{rs[7]}'])
            for sw in ('v_permlane32_swap_b32', 'v_permlane16_swap_b32'):
                p.valu(f'v_mov_b32 v{x}, v{m}', [f'v{x}'], [f'v{m}'])
                p.valu(f'{sw} v{x}, v{m}', [f'v{x}', f'v{m}'], [f'v{x}', f'v{m}'], kind='perm')
                p.valu(f'v_max_f32 v{m}, v{m}, v{x}', [f'v{m}'], [f'v{m}', f'v{x}'])
            for i in range(4):
                p.valu(f'v_sub_f32 v{V_NM+4*t+i}, 0, v{m}', [f'v{V_NM+4*t+i}'], [f'v{m}'])

    def softmax(st):
        for t in range(3):
            for u in range(2):
                r0 = sreg(st, u, t)
                for i in range(4):
                    if FT and st <= 1:
                        p.valu(f'v_add_f32 v{r0+i}, v{r0+i}, v{V_NM+4*t}', [f'v{r0+i}'], [f'v{r0+i}', f'v{V_NM+4*t}'])
                    p.valu(f'v_exp_f32 v{r0+i}, v{r0+i}', [f'v{r0+i}'], [f'v{r0+i}'], kind='trans')
                for h2 in range(2):
                    d = preg(st, t) + 2 * u + h2
                    p.valu(f'v_cvt_pk_bf16_f32 v{d}, v{r0+2*h2}, v{r0+2*h2+1}', [f'v{d}'], R('v', r0 + 2 * h2, 2))

    def pv(st):
        def lsum():
            for t in range(3):
                p.mfma(('a', A_L + 4 * t), ('a', A_ONE), ('v', preg(st, t)), None if st == 0 else ('a', A_L + 4 * t))
        if st == 15:
            lsum()
            T = V_T
            for t in range(3):
                p.valu(f'v_accvgpr_read_b32 v{T+t}, a{A_L+4*t}', [f'v{T+t}'], [f'a{A_L+4*t}'], prio=HP)
                p.valu(f'v_rcp_f32 v{T+3+t}, v{T+t}', [f'v{T+3+t}'], [f'v{T+t}'], kind='trans', prio=HP)
            LO, HI = (127 - 30) << 23, (127 + 30) << 23
            X = V_NM
            for t in range(3):
                p.valu(f'v_subrev_u32 v{X+t}, {LO:#x}, v{T+t}', [f'v{X+t}'], [f'v{T+t}'], prio=HP)
            p.valu(f'v_max3_u32 v{X}, v{X}, v{X+1}, v{X+2}', [f'v{X}'], R('v', X, 3), prio=HP)
            p.valu(f'v_cmp_lt_u32 vcc, {HI-LO:#x}, v{X}', ['vcc'], [f'v{X}'], prio=HP)
            p.salu('s_or_b32 s7, vcc_lo, vcc_hi', ['s7'], ['vcc'], prio=HP)
            p.valu(f'v_mov_b32 v{X+1}, s7', [f'v{X+1}'], ['s7'], prio=HP)
            p.salu(f's_lshl_b32 s58, s{S_W}, 2', ['s58'], [f's{S_W}'], prio=HP)
            p.valu(f'v_mov_b32 v{X+2}, s58', [f'v{X+2}'], ['s58'], prio=HP)
            p.raw(f'ds_write_b32 v{X+2}, v{X+1} offset:{BADA}', 'dsw', ['W:bad'], [f'v{X+1}', f'v{X+2}', 'F:a7'], prio=HP)
            barrier(p, ['W:bad', 'R:K7'], ['F:ae'], prio=HP)
            p.valu(f'v_mov_b32 v{X+3}, 0', [f'v{X+3}'], prio=HP)
            p.raw(f'ds_read_b128 {v(X+4,4)}, v{X+3} offset:{BADA}', 'ds', R('v', X + 4, 4), [f'v{X+3}', 'F:ae'], prio=HP)
            p.valu(f'v_or3_b32 v{X+4}, v{X+4}, v{X+5}, v{X+6}', [f'v{X+4}'], R('v', X + 4, 3), prio=HP)
            p.valu(f'v_or_b32 v{X+4}, v{X+4}, v{X+7}', [f'v{X+4}'], [f'v{X+4}', f'v{X+7}'], prio=HP)
            p.valu(f'v_readfirstlane_b32 s7, v{X+4}', ['s7'], [f'v{X+4}'], prio=HP)
            p.salu('s_cmp_lg_u32 s7, 0\n  s_cbranch_scc1 L_redo', ['F:ok'], ['s7', 'VMORD:', 'SORD:'], prio=HP)
        for dt in range(8):
            d = v_frag(st, dt)
            for t in range(3):
                acc = oacc(dt, t)
                p.mfma(('v', acc), ('a', d), ('v', preg(st, t)), None if st == 0 else ('v', acc))
            if st == 15 and dt & 1:
                ks = dt >> 1
                for t in range(3):
                    dst = V_S + (ks * 3 + t) * 4
                    for b2 in range(2):
                        r0 = oacc(2 * ks + b2, t)
                        for i in range(4):
                            p.valu(f'v_mul_f32 v{r0+i}, v{V_T+3+t}, v{r0+i}', [f'v{r0+i}'], [f'v{r0+i}', f'v{V_T+3+t}'])
                        for h2 in range(2):
                            p.valu(f'v_cvt_pk_bf16_f32 v{dst+2*b2+h2}, v{r0+2*h2}, v{r0+2*h2+1}', [f'v{dst+2*b2+h2}'],
                                   R('v', r0 + 2 * h2, 2))
                    k = ks * 3 + t
                    so = ['0', f's{S_4K}', f's{S_8K}'][k >> 2]
                    p.raw(f'buffer_store_dwordx4 {v(dst,4)}, v{V_L16}, {s(S_OD,4)}, {so} offen offset:{(k&3)*1024}{STF}', 'vms',
                          ['VMORD:', 'D:ost'], R('v', dst, 4) + [f'v{V_L16}', f's{S_4K}', f's{S_8K}', 'F:ok'] + R('s', S_OD, 4), prio=HP)
        if st != 15:
            lsum()

    flush(10 ** 6)
    have = {None} | {f'F:q{i}' for i in range(8)}

    T = V_T

    def arrive(g):
        p.salu('s_and_b32 s7, s2, 1', ['s7'], ['s2', 'F:a0'])
        p.salu('s_lshl_b32 s7, s7, 7', ['s7'], ['s7'])
        p.valu(f'v_lshl_add_u32 v{T}, v0, 12, s7', [f'v{T}'], ['v0', 's7'])
        p.valu(f'v_mov_b32 v{T+1}, 1', [f'v{T+1}'])
        p.raw(f'buffer_atomic_add v{T+1}, v{T}, {s(S_DB,4)}, 0 offen sc1', 'vms', ['VMORD:'],
              [f'v{T}', f'v{T+1}', 'F:a0'] + R('s', S_DB, 4), prio=HP)
        srd(p, S_WS, 78, f's{S_WSO}', 131072)
        srd(p, S_OS, 78, f's{S_OSO}', 98304)
        srd(p, S_OUT, 74, f's{S_OUTO}', ('1572864', f's{S_OUTO}'))

    def chk_load(g):
        p.valu(f'v_lshlrev_b32 v{T}, 3, v{V_L16}', [f'v{T}'], [f'v{V_L16}'])
        p.raw(f'buffer_load_dword v{T+1}, v{T}, {s(S_DB,4)}, 0 offen sc1', 'vml', [f'v{T+1}', 'VMORD:'], [f'v{T}'] + R('s', S_DB, 4),
              early=g, prio=HP)

    def chk_test(g):
        p.valu(f'v_cmp_le_u32 vcc, 0x80, v{T+1}', ['vcc'], [f'v{T+1}'], early=g, prio=HP)
        p.salu('s_cmp_eq_u32 vcc_lo, 3\n  s_cbranch_scc0 L_chk_slow\nL_chk_ret:', ['F:chk'], ['vcc', f'v{T}', f'v{T+1}'], prio=HP)

    def wo_reg(g, f):
        kk, n = divmod(f, 4)
        if n == 0:
            p.salu(f's_mov_b32 s{S_P0}, {kk*4096}', [f's{S_P0}'], ['F:chk'], early=g - 1, prio=HP)
        d = 64 + 4 * f
        p.raw(f'buffer_load_dwordx4 {a(d,4)}, v{V_WV+n}, {s(S_WS,4)}, s{S_P0} offen sc1', 'vml', R('a', d, 4) + ['VMORD:'],
              [f'v{V_WV+n}', f's{S_P0}', 'F:chk'] + R('s', S_WS, 4), early=g, prio=HP)

    def wo_lds(g, i, j, fr):
        if j == 0:
            p.salu(f's_mov_b32 s{S_P1}, {(NPF+i)*4096}', [f's{S_P1}'], ['F:chk', fr], early=g - 2, prio=HP)
        p.salu(f's_add_u32 m0, s{S_M0K}, {WLSLOT[i]*16384}', ['m0'], [f's{S_M0K}', fr], early=g - 1, prio=HP)
        p.raw(f'buffer_load_dwordx4 v{V_L16}, {s(S_WS,4)}, s{S_P1} offen offset:{j*1024} sc1 lds', 'dma', [f'D:wl{i}', 'VMORD:'],
              [f'v{V_L16}', 'm0', f's{S_P1}', 'F:chk', fr] + R('s', S_WS, 4), early=g, prio=HP)

    av = []
    for g0, (w_, J, fr) in rest:
        for j in range(4):
            av.append((int(g0 + j * stp), fr, lambda g, w_=w_, J=J, j=j, fr=fr:
                       dma_kv(p, w_, J, (KSLOT if w_ == 'K' else VSLOT)[J], fr, (j,), g, 0, j == 0 or NLD > 0)))
    CK = int(E('CK', 540))
    av.append((421, 'F:a0', arrive))
    av.append((CK, None, chk_load))
    av.append((CK + int(E('CKD', 70)), None, chk_test))
    P0, P1 = max(CK + int(E('CKD', 70)) + 6, int(E('PF0', 0))), int(E('PF1', 1000))
    for f in range(4 * NPF):
        av.append((int(P0 + (P1 - P0) * f / (4.0 * NPF)), None, lambda g, f=f: wo_reg(g, f)))
    L0, L1 = int(E('PL0', 900)), int(E('PL1', 1160))
    for i in range(NLD):
        for j in range(4):
            av.append((int(L0 + (L1 - L0) * (4 * i + j) / (4.0 * NLD)), WLFREE[i], lambda g, i=i, j=j: wo_lds(g, i, j, WLFREE[i])))
    av.sort(key=lambda t: t[0])

    def flush_rest(upto):
        keep = []
        blocked = set()
        for it in list(av):
            if it[0] < upto and it[1] in have:
                it[2](it[0])
                av.remove(it)

    flush_rest(372)
    barrier(p, ['D:K0', 'R:wq7'], ['L:K0', 'F:qe'], win=2)
    have.add('F:qe')
    flush_rest(420)
    qk(0)
    if FT:
        first_max()
    softmax(0)
    for st in range(16):
        J = st >> 1
        if st & 1 == 0:
            uses = [f'D:V{J}'] + ([f'D:K{J+1}'] if J < 7 else [])
            uses += [f'R:V{J-1}', f'R:K{J-1}'] if J >= 1 else ['D:wost']
            barrier(p, uses, [f'L:V{J}', f'L:K{J+1}', f'F:a{J}'], win=2)
            have.add(f'F:a{J}')
            flush_rest(420 + 102 * (J + 1) if J < 7 else 10 ** 6)
        if st < 15:
            qk(st + 1)
            softmax(st + 1)
        pv(st)
    assert not av


WLSLOT = [6, 3, 4, 5, 8, 9, 7]
WLFREE = ['F:a4', 'F:a4', 'F:a5', 'F:a5', 'F:a6', 'F:a6', 'F:a7']


def phase4():
    T = V_T
    ACC = 16
    nres = 4 * NPF
    pool = [('a', i) for i in range(64 + 4 * nres, 256, 4)] + [('a', i) for i in range(0, 64, 4)] + \
           [('v', i) for i in range(136, 244, 4)]
    NLR = 8 if NLD else 0
    lring = [pool.pop() for _ in range(NLR)]
    oring = [('v', i) for i in range(64, 136, 4)]
    first = 4 * (NPF + NLD)
    slot = {}
    for f in range(nres):
        slot[f] = ('a', 64 + 4 * f)
    for n_, f in enumerate(range(first, 128)):
        slot[f] = pool[n_] if n_ < len(pool) else slot[n_ - len(pool)]
    so_state = {}

    def wload(p, f, **k):
        kk, n = divmod(f, 4)
        if so_state.get('w') != kk:
            so_state['w'] = kk
            p.salu(f's_mov_b32 s{S_P0}, {kk*4096}', [f's{S_P0}'], prio=HP)
        r = slot[f]
        p.raw(f'buffer_load_dwordx4 {rng(r[0], r[1], 4)}, v{V_WV+n}, {s(S_WS,4)}, s{S_P0} offen sc1', 'vml',
              R(r[0], r[1], 4) + ['VMORD:'], [f'v{V_WV+n}', f's{S_P0}'] + R('s', S_WS, 4), prio=HP, **k)

    def oload(p, kk, t, **k):
        if so_state.get('o') != kk:
            so_state['o'] = kk
            p.salu(f's_mov_b32 s{S_P1}, {kk*3072}', [f's{S_P1}'], prio=HP)
        r = oring[(kk * 3 + t) % len(oring)]
        p.raw(f'buffer_load_dwordx4 {rng(r[0], r[1], 4)}, v{V_L16}, {s(S_OS,4)}, s{S_P1} offen offset:{t*1024} sc1', 'vml',
              R(r[0], r[1], 4) + ['VMORD:'], [f'v{V_L16}', f's{S_P1}'] + R('s', S_OS, 4), prio=HP, **k)

    p = Prog()
    V = p.valu
    NA, NB = int(E('NA', 4)), int(E('NB', 20))
    nxt = first
    barrier(p, [], ['F:p4'])
    for _ in range(NA):
        wload(p, nxt); nxt += 1
    for n in range(4):
        p.salu(f's_add_u32 s7, s{S_W}, {n}', ['s7'], [f's{S_W}'])
        p.salu('s_and_b32 s7, s7, 3', ['s7'], ['s7'])
        p.salu('s_mul_i32 s7, s7, 9216', ['s7'], ['s7'])
        if n:
            p.salu(f's_add_u32 s7, s7, {(n-1)*3072}', ['s7'], ['s7'])
        V(f'v_add_u32 v{8+n}, s7, v{V_L16}', [f'v{8+n}'], ['s7', f'v{V_L16}'])
        p.salu(f's_add_u32 s7, s{S_M0K}, {3*16384}', ['s7'], [f's{S_M0K}'])
        V(f'v_add_u32 v{4+n}, s7, v{V_WV+n}', [f'v{4+n}'], ['s7', f'v{V_WV+n}'])
    V('v_and_b32 v12, 15, v0', ['v12'], ['v0'])
    V('v_lshlrev_b32 v12, 10, v12', ['v12'], ['v12'])
    V('v_bfe_u32 v13, v0, 4, 2', ['v13'], ['v0'])
    V('v_lshl_add_u32 v12, v13, 3, v12', ['v12'], ['v12', 'v13'])
    V(f'v_mov_b32 v{T}, 1', [f'v{T}'])
    p.salu('s_mov_b32 s42, 16384', ['s42'])
    p.salu('s_mov_b32 s43, 32768', ['s43'])
    p.raw(f'buffer_store_dword v{T}, v{V_FW}, {s(S_FL,4)}, 0 offen sc1', 'vms', ['VMORD:'],
          [f'v{T}', f'v{V_FW}', 'D:ost'] + R('s', S_FL, 4))
    stamp(p, NSTAMP - 4)
    for _ in range(min(NB, len(pool) - NA)):
        wload(p, nxt); nxt += 1
    p.salu('s_mov_b32 s58, 0', ['s58'])
    p.raw('L_poll:', 'label')
    p.raw(f'buffer_load_dword v{T+1}, v{V_FP}, {s(S_FL,4)}, 0 offen sc1', 'vml', [f'v{T+1}', 'VMORD:'], [f'v{V_FP}'] + R('s', S_FL, 4))
    V(f'v_cmp_eq_u32 vcc, 1, v{T+1}', ['vcc'], [f'v{T+1}'])
    p.salu('s_add_u32 s58, s58, 1', ['s58'], ['s58'])
    p.salu('s_cmp_eq_u32 vcc_lo, 0xff\n  s_cbranch_scc1 L_go', [], ['vcc'])
    p.salu(f's_cmp_lt_u32 s58, {SPIN}\n  s_cbranch_scc1 L_poll\nL_go:', [], ['s58'])
    stamp(p, NSTAMP - 3)
    NPRE = int(E('NPREO', 4))
    for kk in range(NPRE):
        for t in range(3):
            oload(p, kk, t)
    win = p.ops
    p = Prog()
    lr = [0]
    lbase = [3]
    wq_ = list(range(nxt, 128))
    for kk in range(32):
        for n in range(4):
            f = kk * 4 + n
            if NPF <= kk < NPF + NLD:
                sl = WLSLOT[kk - NPF]
                if not (0 <= sl - lbase[0] <= 3):
                    for k2 in range(4):
                        p.valu(f'v_add_u32 v{4+k2}, {(7 - lbase[0])*16384}, v{4+k2}', [f'v{4+k2}'], [f'v{4+k2}'])
                    lbase[0] = 7
                A = lring[lr[0] % NLR]
                lr[0] += 1
                p.raw(f'ds_read_b128 {rng(A[0], A[1], 4)}, v{4+n} offset:{(sl - lbase[0])*16384}', 'ds', R(A[0], A[1], 4),
                      [f'v{4+n}', f'D:wl{kk-NPF}'], win=14)
            else:
                A = slot[f]
            for t in range(3):
                acc = ACC + (n * 3 + t) * 4
                p.mfma(('v', acc), A, oring[(kk * 3 + t) % len(oring)], None if kk == 0 else ('v', acc))
            if n == 0 and kk + NPRE < 32:
                for t in range(3):
                    oload(p, kk + NPRE, t)
            if n == 3:
                cnt = 0
                while wq_ and cnt < int(E('WPER', 2)) or (wq_ and wq_[0] // 4 <= kk + NPRE + 1):
                    f2 = wq_[0]
                    n2 = f2 - first - len(pool)
                    if n2 >= 0 and n2 // 4 > kk:
                        break
                    wload(p, wq_.pop(0))
                    cnt += 1
    assert not wq_
    body = schedule(p.ops, True, 'p4')
    p = Prog()
    V = p.valu
    stamp(p, NSTAMP - 2)
    for n in range(1, 4):
        for t in range(3):
            acc = ACC + (n * 3 + t) * 4
            p.raw(f'ds_write_b128 v{8+n}, {v(acc,4)} offset:{t*1024}', 'dsw', ['W:red'], [f'v{8+n}'] + R('v', acc, 4))
    barrier(p, ['W:red'], ['L:red'])
    for sl in range(3):
        for t in range(3):
            d = 64 + (sl * 3 + t) * 4
            p.raw(f'ds_read_b128 {v(d,4)}, v8 offset:{(sl*3+t)*1024}', 'ds', R('v', d, 4), ['v8', 'L:red'])
    for t in range(3):
        acc = ACC + t * 4
        for sl in range(3):
            d = 64 + (sl * 3 + t) * 4
            for i in range(4):
                V(f'v_add_f32 v{acc+i}, v{acc+i}, v{d+i}', [f'v{acc+i}'], [f'v{acc+i}', f'v{d+i}'])
        for h2 in range(2):
            V(f'v_cvt_pk_bf16_f32 v{112+2*t+h2}, v{acc+2*h2}, v{acc+2*h2+1}', [f'v{112+2*t+h2}'], R('v', acc + 2 * h2, 2))
        so = ['0', 's42', 's43'][t]
        p.raw(f'buffer_store_dwordx2 {v(112+2*t,2)}, v12, {s(S_OUT,4)}, {so} offen', 'vms', [],
              R('v', 112 + 2 * t, 2) + ['v12', 's42', 's43'] + R('s', S_OUT, 4))
    if STAMP:
        p.raw('s_waitcnt vmcnt(0)', 'wait')
    stamp(p, NSTAMP - 1)
    return win, body, p.ops


def redo_path(L):
    T = V_T
    ko = (KSLOT[7] - KBASE[7]) * 16384
    vo = (VSLOT[7] - VBASE[7]) * 16384

    def drain(p):
        p.raw('s_waitcnt vmcnt(0) lgkmcnt(0)', 'wait')
        p.raw('s_nop 7', 'nop')
        p.raw('s_nop 7', 'nop')

    def stage(p, withv):
        p.raw('s_barrier', 'bar')
        for w_, sl in (('K', KSLOT[7]), ('V', VSLOT[7]))[:1 + withv]:
            S, vo_ = (S_K, V_KD) if w_ == 'K' else (S_V, V_VD)
            p.salu(f's_add_u32 m0, s{S_M0K}, {sl*16384}', ['m0'])
            for j in range(4):
                p.raw(f'buffer_load_dwordx4 v{vo_}, {s(S,4)}, s{S_KVO} offen offset:{j*1024} lds', 'dma', [], ['m0'])
        p.raw('s_waitcnt vmcnt(0)', 'wait')
        p.raw('s_barrier', 'bar')

    def scores(p, uu, dst, c):
        for ks in range(4):
            p.raw(f'ds_read_b128 {a(4*ks,4)}, v{V_KA+ks} offset:{ko + uu*1024}', 'ds', R('a', 4 * ks, 4))
        for ks in range(4):
            for t in range(3):
                p.mfma(('v', dst + 4 * t), ('a', 4 * ks), ('v', qfrag(ks, t)),
                       (c(t) if ks == 0 else ('v', dst + 4 * t)))

    def loop_end(p, lab):
        drain(p)
        p.salu(f's_add_u32 s{S_KVO}, s{S_KVO}, 16384', [f's{S_KVO}'])
        p.salu(f's_cmp_lt_u32 s{S_KVO}, 131072\n  s_cbranch_scc1 {lab}')

    L.append('L_redo:')
    p = Prog()
    drain(p)
    for t in range(3):
        p.valu(f'v_mov_b32 v{T+t}, 0xff800000', [f'v{T+t}'])
    p.salu(f's_mov_b32 s{S_KVO}, 0', [f's{S_KVO}'])
    p.raw('L_redo1:', 'label')
    stage(p, 0)
    for uu in range(4):
        scores(p, uu, V_S, lambda t: None)
        for t in range(3):
            r0 = V_S + 4 * t
            p.valu(f'v_max3_f32 v{T+t}, v{T+t}, v{r0}, v{r0+1}', [f'v{T+t}'], [f'v{T+t}', f'v{r0}', f'v{r0+1}'])
            p.valu(f'v_max3_f32 v{T+t}, v{T+t}, v{r0+2}, v{r0+3}', [f'v{T+t}'], [f'v{T+t}', f'v{r0+2}', f'v{r0+3}'])
    loop_end(p, 'L_redo1')
    for t in range(3):
        m, x = T + t, T + 3
        for sw in ('v_permlane32_swap_b32', 'v_permlane16_swap_b32'):
            p.valu(f'v_mov_b32 v{x}, v{m}', [f'v{x}'], [f'v{m}'])
            p.valu(f'{sw} v{x}, v{m}', [f'v{x}', f'v{m}'], [f'v{x}', f'v{m}'], kind='perm')
            p.valu(f'v_max_f32 v{m}, v{m}, v{x}', [f'v{m}'], [f'v{m}', f'v{x}'])
        for i in range(4):
            p.valu(f'v_sub_f32 v{V_NM+4*t+i}, 0, v{m}', [f'v{V_NM+4*t+i}'], [f'v{m}'])
    for r in range(96):
        p.valu(f'v_mov_b32 v{V_O+r}, 0', [f'v{V_O+r}'])
    for r in range(12):
        p.valu(f'v_accvgpr_write_b32 a{A_L+r}, 0', [f'a{A_L+r}'])
    p.salu(f's_mov_b32 s{S_KVO}, 0', [f's{S_KVO}'])
    drain(p)
    p.raw('L_redo2:', 'label')
    stage(p, 1)
    for e in range(2):
        for u in range(2):
            scores(p, 2 * e + u, V_S + 12 * u, lambda t: ('v', V_NM + 4 * t))
        for t in range(3):
            for u in range(2):
                r0 = V_S + 12 * u + 4 * t
                for i in range(4):
                    p.valu(f'v_exp_f32 v{r0+i}, v{r0+i}', [f'v{r0+i}'], [f'v{r0+i}'], kind='trans')
                for h2 in range(2):
                    d = V_P + 4 * t + 2 * u + h2
                    p.valu(f'v_cvt_pk_bf16_f32 v{d}, v{r0+2*h2}, v{r0+2*h2+1}', [f'v{d}'], R('v', r0 + 2 * h2, 2))
        for t in range(3):
            p.mfma(('a', A_L + 4 * t), ('a', A_ONE), ('v', V_P + 4 * t), ('a', A_L + 4 * t))
        for d0 in (0, 4):
            for dt in range(d0, d0 + 4):
                for m in range(2):
                    d = A_VR + 4 * (dt - d0) + 2 * m
                    p.raw(f'ds_read_b64_tr_b16 {a(d,2)}, v{V_VA+dt} offset:{vo + e*2048 + m*1024}', 'ds', R('a', d, 2))
            for dt in range(d0, d0 + 4):
                for t in range(3):
                    p.mfma(('v', oacc(dt, t)), ('a', A_VR + 4 * (dt - d0)), ('v', V_P + 4 * t), ('v', oacc(dt, t)))
    loop_end(p, 'L_redo2')
    for t in range(3):
        p.valu(f'v_accvgpr_read_b32 v{T+t}, a{A_L+4*t}', [f'v{T+t}'], [f'a{A_L+4*t}'])
        p.valu(f'v_rcp_f32 v{T+3+t}, v{T+t}', [f'v{T+3+t}'], [f'v{T+t}'], kind='trans')
    for ks in range(4):
        for t in range(3):
            dst = V_S + (ks * 3 + t) * 4
            for b2 in range(2):
                r0 = oacc(2 * ks + b2, t)
                for i in range(4):
                    p.valu(f'v_mul_f32 v{r0+i}, v{T+3+t}, v{r0+i}', [f'v{r0+i}'], [f'v{r0+i}', f'v{T+3+t}'])
                for h2 in range(2):
                    p.valu(f'v_cvt_pk_bf16_f32 v{dst+2*b2+h2}, v{r0+2*h2}, v{r0+2*h2+1}', [f'v{dst+2*b2+h2}'],
                           R('v', r0 + 2 * h2, 2))
            k = ks * 3 + t
            so = ['0', f's{S_4K}', f's{S_8K}'][k >> 2]
            p.raw(f'buffer_store_dwordx4 {v(dst,4)}, v{V_L16}, {s(S_OD,4)}, {so} offen offset:{(k&3)*1024}{STF}', 'vms',
                  [], R('v', dst, 4))
    drain(p)
    p.raw('s_branch L_stored', 'salu')
    emit(L, finish(p.ops, 'redo'))
    T = V_T
    L += ['L_chk_slow:', '  s_mov_b32 s58, 0', 'L_chk_loop:', '  s_sleep 2',
          f'  buffer_load_dword v{T+1}, v{T}, {s(S_DB,4)}, 0 offen sc1', '  s_waitcnt vmcnt(0)',
          f'  v_cmp_le_u32 vcc, 0x80, v{T+1}', '  s_add_u32 s58, s58, 1', '  s_nop 3', '  s_cmp_eq_u32 vcc_lo, 3',
          '  s_cbranch_scc1 L_chk_ret', f'  s_cmp_lt_u32 s58, {SPIN}', '  s_cbranch_scc1 L_chk_loop', '  s_branch L_chk_ret']


def finish(ops, name, vmq=None):
    ops, vq, dq = insert_waits(ops, vmq)
    ops, nn = pad_hazards(ops)
    print(f'; {name}: {len(ops)} instrs, est {estimate(ops)} clks, nops {nn}, waits {sum(o.kind == "wait" for o in ops)}',
          file=sys.stderr)
    return ops


def emit(L, ops):
    for o in ops:
        L.append('  ' + o.text)


def stamps_out(L, n, end, wsreg=78, slot0=0):
    if STAMP == 3:
        L += ['  s_waitcnt lgkmcnt(0)', '  v_cmp_eq_u32 vcc, 0, v0', '  s_nop 4', '  s_and_saveexec_b64 s[12:13], vcc', f'  s_cbranch_execz {end}',
              '  v_mov_b32 v2, 0', '  s_not_b32 s7, s80', '  v_mov_b32 v3, s7', f'  buffer_atomic_umax v3, v2, {s(S_DB,4)}, 0 offen offset:4 sc1',
              '  v_mov_b32 v4, s80', f'  buffer_atomic_umax v4, v2, {s(S_DB,4)}, 0 offen offset:8 sc1',
              f'  v_mov_b32 v5, s{80+2*(n-1)}', f'  buffer_atomic_umax v5, v2, {s(S_DB,4)}, 0 offen offset:12 sc1']
        for q in range(1, n):
            L += [f'  s_sub_u32 s7, s{80+2*q}, s80', f'  v_mov_b32 v{6+q}, s7', f'  buffer_atomic_add v{6+q}, v2, {s(S_DB,4)}, 0 offen offset:{12+4*q} sc1']
        L.append('  s_waitcnt vmcnt(0)')
        return
    L += ['  s_waitcnt lgkmcnt(0)',
          f'  s_mov_b32 s8, s{wsreg}', f'  s_mov_b32 s9, s{wsreg+1}', '  s_mov_b32 s10, 0x10000', '  s_mov_b32 s11, 0x20000']
    for r in range(2 * n):
        L.append(f'  v_mov_b32 v{4+r}, s{80+r}')
    L += ['  s_lshl_b32 s7, s2, 7', '  v_mov_b32 v2, s7', f'  v_cmp_eq_u32 vcc, {int(E("STW", 0))*64}, v0', '  s_nop 4',
          '  s_and_saveexec_b64 s[12:13], vcc', f'  s_cbranch_execz {end}']
    for q in range(n):
        L.append(f'  buffer_store_dwordx2 v[{4+2*q}:{5+2*q}], v2, s[8:11], 0 offen offset:{8*(q+slot0)}')
    L.append('  s_waitcnt vmcnt(0)')


def gen_k1(L, name):
    L += [f'.globl {name}', '.p2align 8', f'.type {name},@function', f'{name}:']
    if STAMP:
        L.append('  s_memrealtime s[80:81]' if STAMP != 2 else '  s_memtime s[80:81]')
    L += ['  s_cmp_ge_u32 s2, 256', '  s_cbranch_scc1 L_k1_end']
    p = Prog()
    k1_prologue(p)
    dma_wq(p, 0, 0); dma_wq(p, 0, 1)
    for gi in range(3):
        dma_x(p, gi)
    k1_prologue2(p)
    dma_wq(p, 1, 0); dma_wq(p, 1, 1)
    for gi in range(3, NPREX):
        dma_x(p, gi)
    k1_prologue3(p, KBASE[0], VBASE[0])
    if WQPF:
        T = V_T
        p.valu(f'v_bfe_u32 v{T+4}, v0, 1, 4', [f'v{T+4}'], ['v0'])
        p.valu(f'v_and_b32 v{T+5}, 1, v0', [f'v{T+5}'], ['v0'])
        p.valu(f'v_lshlrev_b32 v{T+5}, 7, v{T+5}', [f'v{T+5}'], [f'v{T+5}'])
        p.valu(f'v_lshl_add_u32 v{T+4}, v{T+4}, 13, v{T+5}', [f'v{T+4}'], [f'v{T+4}', f'v{T+5}'])
        p.salu(f's_lshl_b32 s7, s{S_B}, 2', ['s7'], [f's{S_B}'])
        p.salu(f's_add_u32 s7, s7, s{S_W}', ['s7'], ['s7', f's{S_W}'])
        p.salu('s_lshl_b32 s7, s7, 17', ['s7'], ['s7'])
        p.raw(f'buffer_load_dword v{V_S}, v{T+4}, {s(S_WQ,4)}, s7 offen', 'vml', [f'v{V_S}', 'VMORD:'], [f'v{T+4}', 's7'] + R('s', S_WQ, 4))
    if NPREW == 3:
        dma_wq(p, 2, 0); dma_wq(p, 2, 1)
    if int(E('K0G', 20)) < 0:
        dma_kv(p, 'K', 0, KSLOT[0])
    if int(E('WOG', 44)) < 0:
        dma_wo(p, (0, 1, 2, 3))
    pre = p.ops
    p = Prog()
    k1_main(p)
    body = schedule(p.ops, True, 'k1')
    win, body4, epi = phase4()
    lab = [Op('L_stored:', 'label')]
    emit(L, finish(pre + body + lab + win + body4 + epi, 'main'))
    if STAMP:
        stamps_out(L, NSTAMP, 'L_k1_end')
    L += ['L_k1_end:', '  s_endpgm', 'L_codeend:']
    redo_path(L)


def desc(L, name):
    L += ['.section .rodata,"a"', '.p2align 6', f'.amdhsa_kernel {name}', '  .amdhsa_next_free_vgpr 512',
          '  .amdhsa_next_free_sgpr 102', '  .amdhsa_accum_offset 256', '  .amdhsa_group_segment_fixed_size 0',
          '  .amdhsa_kernarg_size 64', '  .amdhsa_user_sgpr_count 2', '  .amdhsa_user_sgpr_kernarg_segment_ptr 1',
          '  .amdhsa_system_sgpr_workgroup_id_x 1', '.end_amdhsa_kernel']


def main():
    out = sys.argv[1]
    L = ['; @launch grid=(256,1,1) block=(256,1,1) lds=163840',
         '.amdgcn_target "amdgcn-amd-amdhsa--gfx950"', '.text']
    gen_k1(L, KNAME)
    desc(L, KNAME)
    open(out, 'w').write('\n'.join(L) + '\n')


if __name__ == '__main__':
    main()
```

```python
import sys, os, struct, math
from sched import *
import sched

KNAME = 'standalone__mha_block_cached__near_ridge_kernel'
E = os.environ.get
KVF = {'0': '', 'nt': ' nt'}[E('KVF', 'nt')]
XF = {'0': '', 'nt': ' nt', 'sc1': ' sc1'}[E('XF', '0')]
WQF = {'0': '', 'nt': ' nt', 'sc1': ' sc1'}[E('WQF', '0')]
WOF = {'0': '', 'nt': ' nt'}[E('WOF', 'nt')]
STF = {'0': '', 'sc1': ' sc1'}[E('STF', 'sc1')]
FT = int(E('FT', 0))
STAMP = int(E('STAMP', 0))
ROT = int(E('ROT', -1))
NPREX = int(E('NPREX', 6))
NPREW = int(E('NPREW', 2))
WOREL = int(E('WOREL', 5))
XREL = int(E('XREL', 7))
WQPF = int(E('WQPF', 1))
CODEPF = int(E('CODEPF', 2))
XLIN = int(E('XLIN', 0))
SH = 0 if int(E('NOSHIFT', 0)) else 8
NOX = int(E('NOX', 0))

WOFF = 0x100000
OOFF = 0x600000
FOFF = 0x80000
NPF = int(E('NPF', 12))
NLD = int(E('NLD', 7))
SPIN = 200000
SCALE = struct.unpack('<I', struct.pack('<f', math.log2(math.e) / math.sqrt(128.0)))[0]


def v(i, n=1): return rng('v', i, n)
def a(i, n=1): return rng('a', i, n)
def s(i, n=1): return rng('s', i, n)


class Prog:
    def __init__(self):
        self.ops = []

    def add(self, op):
        self.ops.append(op)
        return op

    def salu(self, text, defs=(), uses=(), **k):
        d = list(defs) + ['SORD:']
        if not text.startswith(('s_mov', 's_mul', 's_load', 's_getpc', 's_cselect')):
            d.append('scc')
        return self.add(Op(text, 'salu', d, uses, **k))

    def valu(self, text, defs=(), uses=(), kind='valu', **k):
        return self.add(Op(text, kind, defs, uses, **k))

    def mfma(self, d, A, B, c):
        dr = R(d[0], d[1], 4)
        cr = R(c[0], c[1], 4) if c else []
        ct = rng(c[0], c[1], 4) if c else '0'
        t = f'v_mfma_f32_16x16x32_bf16 {rng(d[0], d[1], 4)}, {rng(A[0], A[1], 4)}, {rng(B[0], B[1], 4)}, {ct}'
        return self.add(Op(t, 'mfma', dr, R(A[0], A[1], 4) + R(B[0], B[1], 4) + cr, cr))

    def raw(self, text, kind='other', defs=(), uses=(), **k):
        return self.add(Op(text, kind, defs, uses, **k))


V_L16 = 1
V_KD, V_VD = 2, 3
V_KA = 4
V_VA = 8
V_O = 16
V_Q = 112
V_S = 160
V_P = 208
V_NM = 232
V_T = 244
V_WA = V_P
V_XO = V_P + 4
V_XA = V_P + 6
V_WD = V_P + 8
V_OD = V_P + 12
V_OA = V_P + 16
A_X = 0
A_WR = 192; NWR = 12
A_WO = 240
A_KR = 0; NKR = 6
A_VR = 24; NVR = 6
A_L = 48
A_ONE = 60

S_X, S_WQ, S_K, S_V, S_WO, S_OD, S_WD = 8, 12, 16, 20, 24, 28, 32
S_XO, S_WQO = 40, 48
S_M0W, S_M0K, S_KVO, S_SC, S_4K, S_8K = 36, 37, 38, 39, 56, 57
S_M0X, S_XS = 61, 62
NXG = 6
WQE = NXG * 8192
WQO = WQE + 24576 + 8
S_B, S_H, S_ROT, S_W = 4, 5, 6, 3
S_FL, S_DB = 64, 68
S_WS, S_OS, S_OUT = 8, 12, 24
S_OSO, S_WSO, S_OUTO = 59, 60, 63
S_P0, S_P1 = 40, 41
V_WV = 250
V_FW, V_FP = 254, 255
BADA = 0


def srd(p, base, lo_src, off, nrec):
    if off is None:
        p.salu(f's_mov_b32 s{base}, s{lo_src}', [f's{base}'], [f's{lo_src}'])
        p.salu(f's_mov_b32 s{base+1}, s{lo_src+1}', [f's{base+1}'], [f's{lo_src+1}'])
    else:
        p.salu(f's_add_u32 s{base}, s{lo_src}, {off}', [f's{base}'], [f's{lo_src}', off])
        p.salu(f's_addc_u32 s{base+1}, s{lo_src+1}, 0', [f's{base+1}'], [f's{lo_src+1}', 'scc'])
    if isinstance(nrec, int):
        p.salu(f's_mov_b32 s{base+2}, {nrec}', [f's{base+2}'])
    else:
        p.salu(f's_sub_u32 s{base+2}, {nrec[0]}, {nrec[1]}', [f's{base+2}'], [nrec[1]])
    p.salu(f's_mov_b32 s{base+3}, 0x20000', [f's{base+3}'])


STG = [int(x) for x in E('STG', '0,96,240,372,624,1032,1190').split(',')]
NSTAMP = len(STG) + 5


def stamp(p, i, early=None):
    if STAMP:
        p.raw(f's_mem{"real" if STAMP != 2 else ""}time s[{80+2*i}:{81+2*i}]', 'salu', [f's{80+2*i}', f's{81+2*i}'], [],
              prio=10**6, early=early)


def k1_prologue(p):
    T = V_T
    p.raw('s_load_dwordx8 s[64:71], s[0:1], 0', 'salu', R('s', 64, 8))
    p.raw('s_load_dwordx8 s[72:79], s[0:1], 32', 'salu', R('s', 72, 8))
    V = p.valu
    if CODEPF:
        p.raw('s_getpc_b64 s[28:29]', 'salu', ['s28', 's29'])
        p.raw('L_pc:', 'label')
        p.salu('s_mov_b32 s30, L_codeend - L_pc', ['s30'])
        p.salu('s_mov_b32 s31, 0x20000', ['s31'])
        V(f'v_lshlrev_b32 v{T+4}, 7, v0', [f'v{T+4}'], ['v0'])
        for i in range(CODEPF):
            if i:
                V(f'v_add_u32 v{T+4}, 32768, v{T+4}', [f'v{T+4}'], [f'v{T+4}'])
            p.raw(f'buffer_load_dword v{V_S+1+i}, v{T+4}, s[28:31], 0 offen', 'vml', [f'v{V_S+1+i}', 'VMORD:'], [f'v{T+4}'] + R('s', 28, 4))
    V(f'v_lshrrev_b32 v{T}, 6, v0', [f'v{T}'], ['v0'])
    V(f'v_and_b32 v{T+1}, 63, v0', [f'v{T+1}'], ['v0'])
    V(f'v_readfirstlane_b32 s{S_W}, v{T}', [f's{S_W}'], [f'v{T}'])
    V(f'v_lshrrev_b32 v{T+2}, 4, v{T+1}', [f'v{T+2}'], [f'v{T+1}'])
    V(f'v_and_b32 v{T+3}, 15, v0', [f'v{T+3}'], ['v0'])
    V(f'v_lshlrev_b32 v{V_L16}, 4, v{T+1}', [f'v{V_L16}'], [f'v{T+1}'])
    p.salu('s_and_b32 s7, s2, 7', ['s7'], ['s2'])
    p.salu(f's_lshl_b32 s{S_H}, s7, 2', [f's{S_H}'], ['s7'])
    p.salu('s_bfe_u32 s58, s2, 0x20003', ['s58'], ['s2'])
    p.salu(f's_add_u32 s{S_H}, s{S_H}, s58', [f's{S_H}'], [f's{S_H}', 's58'])
    p.salu(f's_lshr_b32 s{S_B}, s2, 5', [f's{S_B}'], ['s2'])
    if ROT:
        p.salu(f's_lshl_b32 s58, s58, 1', ['s58'], ['s58'])
        p.salu(f's_add_u32 s{S_ROT}, s58, s{S_B}', [f's{S_ROT}'], ['s58', f's{S_B}'])
    else:
        p.salu(f's_mov_b32 s{S_ROT}, 0', [f's{S_ROT}'])
    if ROT == -1:
        p.salu(f's_and_b32 s{S_ROT}, s2, 7', [f's{S_ROT}'], ['s2'])
    if ROT >= 2:
        p.salu(f's_lshr_b32 s58, s58, 1', ['s58'], ['s58'])
        p.salu(f's_xor_b32 s{S_ROT}, s58, s{S_B}', [f's{S_ROT}'], ['s58', f's{S_B}'])
        p.salu(f's_and_b32 s{S_ROT}, s{S_ROT}, {ROT-1}', [f's{S_ROT}'], [f's{S_ROT}'])
    for i in range(8):
        if ROT >= 2:
            p.salu(f's_xor_b32 s{S_XO+i}, s{S_ROT}, {i}', [f's{S_XO+i}'], [f's{S_ROT}'])
        else:
            p.salu(f's_add_u32 s{S_XO+i}, s{S_ROT}, {i}', [f's{S_XO+i}'], [f's{S_ROT}'])
            p.salu(f's_and_b32 s{S_XO+i}, s{S_XO+i}, 7', [f's{S_XO+i}'], [f's{S_XO+i}'])
        p.salu(f's_lshl_b32 s{S_WQO+i}, s{S_XO+i}, 19', [f's{S_WQO+i}'], [f's{S_XO+i}'])
        p.salu(f's_lshl_b32 s{S_XO+i}, s{S_XO+i}, 7', [f's{S_XO+i}'], [f's{S_XO+i}'])
    p.salu(f's_lshl_b32 s{S_M0W}, s{S_W}, 11', [f's{S_M0W}'], [f's{S_W}'])
    p.salu(f's_lshl_b32 s{S_M0K}, s{S_W}, 12', [f's{S_M0K}'], [f's{S_W}'])
    p.salu(f's_mul_i32 s{S_M0X}, s{S_W}, {NXG*2048}', [f's{S_M0X}'], [f's{S_W}'])
    p.salu(f's_lshl_b32 s7, s{S_W}, 17', ['s7'], [f's{S_W}'])
    V(f'v_lshlrev_b32 v{T+4}, 2, v{T+2}', [f'v{T+4}'], [f'v{T+2}'])
    V(f'v_xor_b32 v{T+4}, v{T+4}, v{T+3}', [f'v{T+4}'], [f'v{T+4}', f'v{T+3}'])
    V(f'v_lshlrev_b32 v{T+4}, 4, v{T+4}', [f'v{T+4}'], [f'v{T+4}'])
    V(f'v_lshl_add_u32 v{T+4}, v{T+2}, 13, v{T+4}', [f'v{T+4}'], [f'v{T+4}', f'v{T+2}'])
    V(f'v_add_u32 v{V_WD}, s7, v{T+4}', [f'v{V_WD}'], [f'v{T+4}', 's7'])
    for j in range(1, 4):
        V(f'v_add_u32 v{V_WD+j}, {j*32768 - (j&1)*1024}, v{V_WD}', [f'v{V_WD+j}'], [f'v{V_WD}'])
    p.salu(f's_mul_i32 s58, s{S_W}, 49152', ['s58'], [f's{S_W}'])
    V(f'v_and_b32 v{T+5}, 7, v0', [f'v{T+5}'], ['v0'])
    V(f'v_xor_b32 v{T+5}, v{T+5}, v{T+2}', [f'v{T+5}'], [f'v{T+5}', f'v{T+2}'])
    V(f'v_lshlrev_b32 v{T+5}, 4, v{T+5}', [f'v{T+5}'], [f'v{T+5}'])
    V(f'v_bfe_u32 v{T+6}, v0, 3, 3', [f'v{T+6}'], ['v0'])
    V(f'v_lshl_add_u32 v{T+5}, v{T+6}, 10, v{T+5}', [f'v{T+5}'], [f'v{T+5}', f'v{T+6}'])
    V(f'v_add_u32 v{V_XO}, s58, v{T+5}', [f'v{V_XO}'], [f'v{T+5}', 's58'])
    V(f'v_xor_b32 v{V_XO+1}, 64, v{V_XO}', [f'v{V_XO+1}'], [f'v{V_XO}'])
    V(f'v_add_u32 v{V_XO+1}, 7168, v{V_XO+1}', [f'v{V_XO+1}'], [f'v{V_XO+1}'])
    p.raw('s_waitcnt lgkmcnt(0)', 'wait', [], R('s', 64, 16))
    p.salu(f's_lshl_b32 s7, s{S_H}, 8', ['s7'], [f's{S_H}'])
    srd(p, S_WQ, 70, 's7', ('0x400000', 's7'))
    p.salu(f's_mul_i32 s7, s{S_B}, 196608', ['s7'], [f's{S_B}'])
    srd(p, S_X, 64, 's7', 196608)


def k1_prologue2(p):
    T = V_T
    V = p.valu
    p.salu(f's_lshl_b32 s7, s{S_B}, 5', ['s7'], [f's{S_B}'])
    p.salu(f's_add_u32 s7, s7, s{S_H}', ['s7'], ['s7', f's{S_H}'])
    p.salu('s_lshl_b32 s7, s7, 17', ['s7'], ['s7'])
    srd(p, S_K, 66, 's7', 131072)
    srd(p, S_V, 68, 's7', 131072)
    p.salu(f's_lshl_b32 s58, s{S_W}, 2', ['s58'], [f's{S_W}'])
    V(f'v_add_u32 v{T+4}, s58, v{T+2}', [f'v{T+4}'], [f'v{T+2}', 's58'])
    V(f'v_xor_b32 v{T+4}, v{T+4}, v{T+3}', [f'v{T+4}'], [f'v{T+4}', f'v{T+3}'])
    V(f'v_lshlrev_b32 v{T+5}, 8, v{T+2}', [f'v{T+5}'], [f'v{T+2}'])
    V(f'v_add_u32 v{T+5}, s{S_M0K}, v{T+5}', [f'v{T+5}'], [f'v{T+5}', f's{S_M0K}'])
    V(f'v_lshl_add_u32 v{V_KD}, v{T+4}, 4, v{T+5}', [f'v{V_KD}'], [f'v{T+4}', f'v{T+5}'])
    p.salu(f's_and_b32 s58, s{S_W}, 1', ['s58'], [f's{S_W}'])
    p.salu('s_lshl_b32 s58, s58, 2', ['s58'], ['s58'])
    V(f'v_add_u32 v{T+4}, s58, v{T+2}', [f'v{T+4}'], [f'v{T+2}', 's58'])
    V(f'v_lshlrev_b32 v{T+4}, 1, v{T+4}', [f'v{T+4}'], [f'v{T+4}'])
    V(f'v_xor_b32 v{T+4}, v{T+4}, v{T+3}', [f'v{T+4}'], [f'v{T+4}', f'v{T+3}'])
    V(f'v_lshl_add_u32 v{V_VD}, v{T+4}, 4, v{T+5}', [f'v{V_VD}'], [f'v{T+4}', f'v{T+5}'])
    V(f'v_bfe_u32 v{T+6}, v0, 2, 2', [f'v{T+6}'], ['v0'])
    V(f'v_and_b32 v{T+7}, 3, v0', [f'v{T+7}'], ['v0'])
    V(f'v_and_b32 v{T+8}, 1, v{T+2}', [f'v{T+8}'], [f'v{T+2}'])
    V(f'v_lshrrev_b32 v{T+4}, 1, v{T+3}', [f'v{T+4}'], [f'v{T+3}'])
    V(f'v_xor_b32 v{T+4}, v{T+4}, v{T+2}', [f'v{T+4}'], [f'v{T+4}', f'v{T+2}'])
    V(f'v_lshlrev_b32 v{T+4}, 4, v{T+4}', [f'v{T+4}'], [f'v{T+4}'])
    V(f'v_lshl_add_u32 v{T+4}, v{T+3}, 7, v{T+4}', [f'v{T+4}'], [f'v{T+4}', f'v{T+3}'])
    V(f'v_add_u32 v{V_XA}, s{S_M0X}, v{T+4}', [f'v{V_XA}'], [f'v{T+4}', f's{S_M0X}'])
    V(f'v_xor_b32 v{V_XA+1}, 64, v{V_XA}', [f'v{V_XA+1}'], [f'v{V_XA}'])
    V(f'v_lshrrev_b32 v{T+4}, 1, v{T+2}', [f'v{T+4}'], [f'v{T+2}'])
    V(f'v_lshlrev_b32 v{T+4}, 11, v{T+4}', [f'v{T+4}'], [f'v{T+4}'])
    V(f'v_mul_u32_u24 v{T+5}, {WQO-WQE}, v{T+8}', [f'v{T+5}'], [f'v{T+8}'])
    V(f'v_add_u32 v{T+4}, v{T+4}, v{T+5}', [f'v{T+4}'], [f'v{T+4}', f'v{T+5}'])
    V(f'v_add_u32 v{T+4}, {WQE}, v{T+4}', [f'v{T+4}'], [f'v{T+4}'])
    V(f'v_lshl_add_u32 v{T+4}, v{T+6}, 8, v{T+4}', [f'v{T+4}'], [f'v{T+4}', f'v{T+6}'])
    V(f'v_lshl_add_u32 v{T+4}, v{T+7}, 4, v{T+4}', [f'v{T+4}'], [f'v{T+4}', f'v{T+7}'])
    for ks in range(4):
        V(f'v_xor_b32 v{T+5}, {ks}, v{T+6}', [f'v{T+5}'], [f'v{T+6}'])
        V(f'v_lshl_add_u32 v{V_WA+ks}, v{T+5}, 6, v{T+4}', [f'v{V_WA+ks}'], [f'v{T+5}', f'v{T+4}'])


def k1_prologue3(p, kslot0, vslot0):
    T = V_T
    V = p.valu
    V(f'v_lshlrev_b32 v{T+4}, 8, v{T+7}', [f'v{T+4}'], [f'v{T+7}'])
    V(f'v_lshl_add_u32 v{T+4}, v{T+6}, 12, v{T+4}', [f'v{T+4}'], [f'v{T+4}', f'v{T+6}'])
    V(f'v_add_u32 v{T+4}, {kslot0*16384}, v{T+4}', [f'v{T+4}'], [f'v{T+4}'])
    for ks in range(4):
        V(f'v_add_u32 v{T+5}, {4*ks}, v{T+2}', [f'v{T+5}'], [f'v{T+2}'])
        V(f'v_xor_b32 v{T+5}, v{T+5}, v{T+3}', [f'v{T+5}'], [f'v{T+5}', f'v{T+3}'])
        V(f'v_lshl_add_u32 v{V_KA+ks}, v{T+5}, 4, v{T+4}', [f'v{V_KA+ks}'], [f'v{T+5}', f'v{T+4}'])
    V(f'v_lshlrev_b32 v{T+4}, 12, v{T+2}', [f'v{T+4}'], [f'v{T+2}'])
    V(f'v_lshl_add_u32 v{T+4}, v{T+6}, 8, v{T+4}', [f'v{T+4}'], [f'v{T+4}', f'v{T+6}'])
    V(f'v_and_b32 v{T+5}, 1, v0', [f'v{T+5}'], ['v0'])
    V(f'v_lshl_add_u32 v{T+4}, v{T+5}, 3, v{T+4}', [f'v{T+4}'], [f'v{T+4}', f'v{T+5}'])
    V(f'v_add_u32 v{T+4}, {vslot0*16384}, v{T+4}', [f'v{T+4}'], [f'v{T+4}'])
    V(f'v_lshl_add_u32 v{T+9}, v{T+8}, 2, v{T+6}', [f'v{T+9}'], [f'v{T+8}', f'v{T+6}'])
    V(f'v_lshlrev_b32 v{T+9}, 1, v{T+9}', [f'v{T+9}'], [f'v{T+9}'])
    V(f'v_bfe_u32 v{T+10}, v0, 1, 1', [f'v{T+10}'], ['v0'])
    V(f'v_or_b32 v{T+9}, v{T+9}, v{T+10}', [f'v{T+9}'], [f'v{T+9}', f'v{T+10}'])
    for dt in range(8):
        V(f'v_xor_b32 v{T+5}, {2*dt}, v{T+9}', [f'v{T+5}'], [f'v{T+9}'])
        V(f'v_lshl_add_u32 v{V_VA+dt}, v{T+5}, 4, v{T+4}', [f'v{V_VA+dt}'], [f'v{T+5}', f'v{T+4}'])
    V(f'v_bfe_u32 v{T+4}, v0, 3, 3', [f'v{T+4}'], ['v0'])
    V(f'v_and_b32 v{T+5}, 7, v0', [f'v{T+5}'], ['v0'])
    V(f'v_lshlrev_b32 v{T+11}, 1, v{T+2}', [f'v{T+11}'], [f'v{T+2}'])
    V(f'v_xor_b32 v{T+5}, v{T+5}, v{T+11}', [f'v{T+5}'], [f'v{T+5}', f'v{T+11}'])
    V(f'v_lshlrev_b32 v{T+5}, 4, v{T+5}', [f'v{T+5}'], [f'v{T+5}'])
    V(f'v_lshl_add_u32 v{V_OD}, v{T+4}, 10, v{T+5}', [f'v{V_OD}'], [f'v{T+4}', f'v{T+5}'])
    for j in range(1, 4):
        V(f'v_add_u32 v{V_OD+j}, {j*7168}, v{V_OD}', [f'v{V_OD+j}'], [f'v{V_OD}'])
    V(f'v_lshl_add_u32 v{T+4}, v{T+2}, 2, v{T+6}', [f'v{T+4}'], [f'v{T+2}', f'v{T+6}'])
    V(f'v_and_b32 v{T+5}, 6, v{T+4}', [f'v{T+5}'], [f'v{T+4}'])
    V(f'v_or_b32 v{T+5}, v{T+5}, v{T+10}', [f'v{T+5}'], [f'v{T+5}', f'v{T+10}'])
    V(f'v_lshlrev_b32 v{T+4}, 7, v{T+4}', [f'v{T+4}'], [f'v{T+4}'])
    V(f'v_and_b32 v{T+11}, 1, v0', [f'v{T+11}'], ['v0'])
    V(f'v_lshl_add_u32 v{T+4}, v{T+11}, 3, v{T+4}', [f'v{T+4}'], [f'v{T+4}', f'v{T+11}'])
    V(f'v_add_u32 v{T+4}, s{S_M0K}, v{T+4}', [f'v{T+4}'], [f'v{T+4}', f's{S_M0K}'])
    V(f'v_add_u32 v{T+4}, {WOSLOT*16384}, v{T+4}', [f'v{T+4}'], [f'v{T+4}'])
    for n4 in range(4):
        V(f'v_xor_b32 v{T+11}, {2*n4}, v{T+5}', [f'v{T+11}'], [f'v{T+5}'])
        V(f'v_lshl_add_u32 v{V_OA+n4}, v{T+11}, 4, v{T+4}', [f'v{V_OA+n4}'], [f'v{T+11}', f'v{T+4}'])
    p.salu('s_lshr_b32 s58, s2, 3', ['s58'], ['s2'])
    p.salu('s_lshl_b32 s58, s58, 2', ['s58'], ['s58'])
    p.salu(f's_add_u32 s58, s58, s{S_W}', ['s58'], ['s58', f's{S_W}'])
    p.salu('s_and_b32 s59, s2, 7', ['s59'], ['s2'])
    p.salu('s_lshl_b32 s7, s58, 15', ['s7'], ['s58'])
    p.salu('s_lshl_b32 s60, s59, 7', ['s60'], ['s59'])
    p.salu('s_add_u32 s7, s7, s60', ['s7'], ['s7', 's60'])
    srd(p, S_WO, 72, 's7', ('0x400000', 's7'))
    p.salu('s_add_u32 s7, s60, s58', ['s7'], ['s60', 's58'])
    p.salu('s_lshl_b32 s7, s7, 12', ['s7'], ['s7'])
    p.salu(f's_add_u32 s7, s7, {WOFF}', ['s7'], ['s7'])
    srd(p, S_WD, 78, 's7', 4096)
    p.salu(f's_lshl_b32 s7, s{S_B}, 2', ['s7'], [f's{S_B}'])
    p.salu(f's_add_u32 s7, s7, s{S_W}', ['s7'], ['s7', f's{S_W}'])
    p.salu('s_lshl_b32 s7, s7, 5', ['s7'], ['s7'])
    p.salu(f's_add_u32 s7, s7, s{S_H}', ['s7'], ['s7', f's{S_H}'])
    p.salu('s_mul_i32 s7, s7, 12288', ['s7'], ['s7'])
    p.salu(f's_add_u32 s7, s7, {OOFF}', ['s7'], ['s7'])
    srd(p, S_OD, 78, 's7', 12288)
    p.salu(f's_lshl_b32 s7, s{S_B}, 2', ['s7'], [f's{S_B}'])
    p.salu(f's_add_u32 s7, s7, s{S_W}', ['s7'], ['s7', f's{S_W}'])
    p.salu('s_lshl_b32 s7, s7, 5', ['s7'], ['s7'])
    p.salu(f's_add_u32 s7, s7, s{S_H}', ['s7'], ['s7', f's{S_H}'])
    p.salu('s_lshl_b32 s7, s7, 7', ['s7'], ['s7'])
    V(f'v_lshl_add_u32 v{V_FW}, v{T+1}, 20, s7', [f'v{V_FW}'], [f'v{T+1}', 's7'])
    p.salu(f's_mov_b32 s7, {FOFF}', ['s7'])
    srd(p, S_FL, 78, 's7', 131072)
    srd(p, S_DB, 76, None, 256)
    p.salu('s_and_b32 s58, s2, 6', ['s58'], ['s2'])
    p.salu('s_bfe_u32 s7, s2, 0x10003', ['s7'], ['s2'])
    p.salu('s_add_u32 s58, s58, s7', ['s58'], ['s58', 's7'])
    p.salu('s_lshl_b32 s58, s58, 2', ['s58'], ['s58'])
    p.salu('s_bfe_u32 s7, s2, 0x20004', ['s7'], ['s2'])
    p.salu('s_add_u32 s58, s58, s7', ['s58'], ['s58', 's7'])
    p.salu(f's_mul_i32 s{S_OUTO}, s58, 49152', [f's{S_OUTO}'], ['s58'])
    p.salu('s_lshl_b32 s58, s58, 2', ['s58'], ['s58'])
    p.salu(f's_add_u32 s58, s58, s{S_W}', ['s58'], ['s58', f's{S_W}'])
    p.salu(f's_mul_i32 s{S_OSO}, s58, 98304', [f's{S_OSO}'], ['s58'])
    p.salu(f's_add_u32 s{S_OSO}, s{S_OSO}, {OOFF}', [f's{S_OSO}'], [f's{S_OSO}'])
    p.salu('s_lshl_b32 s58, s58, 10', ['s58'], ['s58'])
    V(f'v_lshrrev_b32 v{T+4}, 3, v{T+1}', [f'v{T+4}'], [f'v{T+1}'])
    V(f'v_lshl_add_u32 v{T+4}, v{T+4}, 20, s58', [f'v{T+4}'], [f'v{T+4}', 's58'])
    V(f'v_lshl_add_u32 v{V_FP}, v{T+1}, 7, v{T+4}', [f'v{V_FP}'], [f'v{T+1}', f'v{T+4}'])
    p.salu('s_and_b32 s58, s2, 1', ['s58'], ['s2'])
    p.salu('s_lshl_b32 s58, s58, 2', ['s58'], ['s58'])
    p.salu('s_lshr_b32 s7, s2, 6', ['s7'], ['s2'])
    p.salu('s_add_u32 s58, s58, s7', ['s58'], ['s58', 's7'])
    p.salu('s_lshl_b32 s58, s58, 2', ['s58'], ['s58'])
    p.salu(f's_add_u32 s58, s58, s{S_W}', ['s58'], ['s58', f's{S_W}'])
    p.salu(f's_lshl_b32 s{S_WSO}, s58, 17', [f's{S_WSO}'], ['s58'])
    p.salu(f's_add_u32 s{S_WSO}, s{S_WSO}, {WOFF}', [f's{S_WSO}'], [f's{S_WSO}'])
    p.salu('s_lshl_b32 s58, s58, 5', ['s58'], ['s58'])
    p.salu(f's_add_u32 s{S_OUTO}, s{S_OUTO}, s58', [f's{S_OUTO}'], [f's{S_OUTO}', 's58'])
    for n in range(4):
        p.salu(f's_add_u32 s7, s{S_W}, {n}', ['s7'], [f's{S_W}'])
        p.salu('s_and_b32 s7, s7, 3', ['s7'], ['s7'])
        p.salu('s_lshl_b32 s7, s7, 10', ['s7'], ['s7'])
        V(f'v_add_u32 v{V_WV+n}, s7, v{V_L16}', [f'v{V_WV+n}'], ['s7', f'v{V_L16}'])
    V(f'v_mov_b32 v{T+4}, 0', [f'v{T+4}'])
    p.raw(f'buffer_store_dword v{T+4}, v{V_FW}, {s(S_FL,4)}, 0 offen sc1', 'vms', ['VMORD:'], [f'v{T+4}', f'v{V_FW}'] + R('s', S_FL, 4))
    p.salu(f's_mov_b32 s{S_SC}, {SCALE:#x}', [f's{S_SC}'])
    p.salu(f's_mov_b32 s{S_4K}, 4096', [f's{S_4K}'])
    p.salu(f's_mov_b32 s{S_8K}, 8192', [f's{S_8K}'])


HP = 10 ** 5


def dma_wq(p, pos, half, free=None, early=None):
    u = [free] if free else []
    k = dict(prio=HP, early=None if early is None else early - 1)
    p.salu(f's_add_u32 m0, s{S_M0W}, {(WQO if half else WQE) + (pos % 3) * 8192}', ['m0'], [f's{S_M0W}'] + u, **k)
    for j in range(2):
        p.raw(f'buffer_load_dwordx4 v{V_WD+2*half+j}, {s(S_WQ,4)}, s{S_WQO+pos} offen offset:{j*1024}{WQF} lds', 'dma',
              [f'D:wq{pos}', 'VMORD:'], [f'v{V_WD+2*half+j}', 'm0', f's{S_WQO+pos}'] + R('s', S_WQ, 4) + u, prio=HP, early=early)


def dma_x(p, gi, early=None):
    pos, t = divmod(gi, 3)
    u = [f'R:x{gi-NXG}'] if gi >= NXG else []
    k = dict(prio=HP, early=None if early is None else early - 2)
    p.salu(f's_add_u32 m0, s{S_M0X}, {(gi % NXG) * 2048}', ['m0'], [f's{S_M0X}'], **k)
    p.salu(f's_add_u32 s{S_XS}, s{S_XO+pos}, {t*16384}', [f's{S_XS}'], [f's{S_XO+pos}'], **k)
    for j in range(2):
        p.raw(f'buffer_load_dwordx4 v{V_XO+j}, {s(S_X,4)}, s{S_XS} offen offset:{j*1024}{XF} lds', 'dma',
              [f'D:x{gi}', 'VMORD:'], [f'v{V_XO+j}', 'm0', f's{S_XS}'] + R('s', S_X, 4) + u, prio=HP, early=early)


def read_x(p, gi, early=None):
    pos, t = divmod(gi, 3)
    for e in range(2):
        d = A_X + (pos * 6 + e * 3 + t) * 4
        p.raw(f'ds_read_b128 {a(d,4)}, v{V_XA+e} offset:{(gi % NXG) * 2048}', 'ds', R('a', d, 4) + [f'R:x{gi}', 'R:xall'],
              [f'v{V_XA+e}', f'D:x{gi}'], prio=HP, early=early)


def dma_kv(p, which, J, slot, free=None, pieces=(0, 1, 2, 3), early=None, step=0, setm0=True):
    S, vo = (S_K, V_KD) if which == 'K' else (S_V, V_VD)
    assert free is None or any(free in o.defs for o in p.ops), (which, J, free)
    u = [free] if free else []
    k = dict(prio=HP, early=None if early is None else early - 2)
    if setm0:
        p.salu(f's_add_u32 m0, s{S_M0K}, {slot*16384}', ['m0'], [f's{S_M0K}'] + u, **k)
    if pieces[0] == 0:
        p.salu(f's_mov_b32 s{S_KVO}, {J*16384}', [f's{S_KVO}'], u, **k)
    for n, j in enumerate(pieces):
        p.raw(f'buffer_load_dwordx4 v{vo}, {s(S,4)}, s{S_KVO} offen offset:{j*1024}{KVF} lds', 'dma',
              [f'D:{which}{J}', 'VMORD:'], [f'v{vo}', 'm0', f's{S_KVO}'] + R('s', S, 4) + u, prio=HP,
              early=None if early is None else int(early + n * step))


def dma_wo(p, pieces, early=None):
    p.salu(f's_add_u32 m0, s{S_M0K}, {WOSLOT*16384}', ['m0'], [f's{S_M0K}'], prio=HP, early=None if early is None else early - 1)
    for j in pieces:
        p.raw(f'buffer_load_dwordx4 v{V_OD+j}, {s(S_WO,4)}, 0 offen offset:{j*1024}{WOF} lds', 'dma',
              ['D:wo', 'VMORD:'], [f'v{V_OD+j}', 'm0'] + R('s', S_WO, 4), prio=HP, early=early)


def barrier(p, uses, defs, **k):
    return p.raw('s_barrier', 'bar', list(defs) + ['BARORD:'], list(uses), **k)


def qacc(ks, b2, t): return V_O + ((ks * 2 + b2) * 3 + t) * 4
def oacc(dt, t): return V_O + (dt * 3 + t) * 4
def qfrag(ks, t): return V_Q + (ks * 3 + t) * 4
def sreg(st, u, t): return V_S + (st & 1) * 24 + (u * 3 + t) * 4
def preg(st, t): return V_P + (st & 1) * 12 + t * 4


KSLOT = [8, 7, 1, 6, 4, 8, 7, 1]
VSLOT = [9, 0, 2, 3, 5, 9, 0, 2]
KBASE = [7, 7, 1, 4, 4, 7, 7, 1]
VBASE = [6, 0, 0, 0, 5, 6, 0, 0]
WOSLOT = 7


def k1_main(p):
    DSWIN = int(E('DSWIN', 12))
    WQWIN = int(E('WQWIN', 27))
    wr = [0]

    def wq_frag(pos, e, ks, b2):
        d = A_WR + (wr[0] % NWR) * 4
        wr[0] += 1
        for m in range(2):
            off = (pos % 3) * 8192 + e * 4096 + m * 1024 + 8 * b2
            p.raw(f'ds_read_b64_tr_b16 {a(d+2*m,2)}, v{V_WA+ks} offset:{off}', 'ds',
                  R('a', d + 2 * m, 2) + [f'R:wq{pos}'], [f'v{V_WA+ks}', f'L:wq{pos}'], win=WQWIN - sched.DS_LAT)
        return d

    def q_mfmas(pos, e, ks, b2):
        d = wq_frag(pos, e, ks, b2)
        for t in range(3):
            acc = qacc(ks, b2, t)
            first = pos == 0 and e == 0
            p.mfma(('v', acc), ('a', d), ('a', A_X + (pos * 6 + e * 3 + t) * 4), None if first else ('v', acc))

    def convert_q(ks):
        for t in range(3):
            for b2 in range(2):
                r0 = qacc(ks, b2, t)
                for i in range(4):
                    p.valu(f'v_mul_f32 v{r0+i}, s{S_SC}, v{r0+i}', [f'v{r0+i}'], [f'v{r0+i}', f's{S_SC}'])
                for h2 in range(2):
                    d = qfrag(ks, t) + 2 * b2 + h2
                    p.valu(f'v_cvt_pk_bf16_f32 v{d}, v{r0+2*h2}, v{r0+2*h2+1}', [f'v{d}'], R('v', r0 + 2 * h2, 2))

    def wo_publish(early):
        for n4 in range(4):
            for m in range(2):
                d = A_WO + n4 * 4 + 2 * m
                p.raw(f'ds_read_b64_tr_b16 {a(d,2)}, v{V_OA+n4} offset:{m*2048}', 'ds',
                      R('a', d, 2) + ['R:wo'], [f'v{V_OA+n4}', 'D:wo'], early=early, prio=HP // 2)

    def wo_store(early, n4):
        d = A_WO + n4 * 4
        p.raw(f'buffer_store_dwordx4 {a(d,4)}, v{V_L16}, {s(S_WD,4)}, 0 offen offset:{n4*1024}{STF}', 'vms',
              ['VMORD:', 'D:wost'], R('a', d, 4) + [f'v{V_L16}'] + R('s', S_WD, 4), early=early, prio=HP)

    ev = []
    XL = int(E('XLEAD', 40))
    XP = float(E('XPACE', 12))
    xr = lambda gi: -10 if gi < 3 else max(min(16 * gi - XL, int(XP * gi + float(E('XOFS', 0)))), int(E('XR0', 28)) + 5 * (gi - 3))
    for gi in range(3, 24):
        ev.append((xr(gi), 0, lambda g, gi=gi: read_x(p, gi, g)))
    for gi in range(NPREX, 24):
        g0 = 1 + 5 * (gi - NPREX)
        if gi >= NXG:
            g0 = max(g0, xr(gi - NXG) + 9)
        ev.append((g0, 1, lambda g, gi=gi: dma_x(p, gi, g)))
    if NPREW < 3:
        ev.append((3, 1, lambda g: dma_wq(p, 2, 0, None, g)))
        ev.append((8, 1, lambda g: dma_wq(p, 2, 1, None, g)))
    for pos in range(3, 8):
        for half in range(2):
            ev.append((48 * (pos - 3) + 28 + 14 * half, 1, lambda g, pos=pos, half=half: dma_wq(p, pos, half, f'F:q{pos-2}', g)))
    G0, G1 = int(E('AG0', 215)), int(E('AG1', 1050))
    tiles = [('V', 0, None), ('K', 1, f'F:q{WOREL}'), ('V', 1, f'F:q{XREL}'), ('K', 2, f'F:q{XREL}'), ('V', 2, f'F:q{XREL}'),
             ('K', 3, 'F:q6'), ('V', 3, 'F:qe'), ('K', 4, 'F:qe'), ('V', 4, 'F:qe'),
             ('K', 5, 'F:a1'), ('V', 5, 'F:a1'), ('K', 6, 'F:a2'), ('V', 6, 'F:a2'), ('K', 7, 'F:a3'), ('V', 7, 'F:a3')]
    stp = (G1 - G0) / (4.0 * len(tiles))
    rest = []
    for n, (w_, J, fr) in enumerate(tiles):
        g0 = G0 + 4 * n * stp
        if g0 + 3 * stp < 360:
            for j0 in (0, 2):
                gq = int(g0 + j0 * stp)
                if fr:
                    gq = max(gq, 48 * (int(fr[3]) - 1) + 24 + j0)
                ev.append((gq, 1, lambda g, w_=w_, J=J, j0=j0, fr=fr: dma_kv(p, w_, J, (KSLOT if w_ == 'K' else VSLOT)[J], fr, (j0, j0 + 1), g)))
        else:
            rest.append((g0, (w_, J, fr)))
    for nm, dflt in (('WO', 44), ('K0', 20)):
        g0 = int(E(nm + 'G', dflt))
        if g0 >= 0:
            for j0 in (0, 2):
                if nm == 'WO':
                    ev.append((g0 + 6 * j0, 1, lambda g, j0=j0: dma_wo(p, (j0, j0 + 1), g)))
                else:
                    ev.append((g0 + 6 * j0, 1, lambda g, j0=j0: dma_kv(p, 'K', 0, KSLOT[0], None, (j0, j0 + 1), g)))
    ev.append((int(E('WORD', 150)), 2, wo_publish))
    for n4 in range(4):
        ev.append((int(E('WOST', 290)) + 4 * n4, 1, lambda g, n4=n4: wo_store(g, n4)))
    ev.sort(key=lambda t: t[:2])

    def flush(upto):
        while ev and ev[0][0] < upto:
            g, _, f = ev.pop(0)
            f(g)

    for pos in range(8):
        uses = [f'D:wq{pos}']
        if pos >= 1:
            uses.append(f'R:wq{pos-1}')
        if pos == WOREL:
            uses.append('R:wo')
        if pos == XREL:
            uses.append('R:xall')
        barrier(p, uses, [f'L:wq{pos}', f'F:q{pos}'], win=WQWIN - sched.DS_LAT + 1)
        if pos == 0:
            for i_, g_ in enumerate(STG): stamp(p, 1 + i_, g_)
            for gi in range(3):
                read_x(p, gi)
        flush(48 * pos + 24)
        if pos < 7:
            for e in range(2):
                for ks in range(4):
                    for b2 in range(2):
                        q_mfmas(pos, e, ks, b2)
        else:
            for ks in range(4):
                for e in range(2):
                    for b2 in range(2):
                        q_mfmas(pos, e, ks, b2)
                convert_q(ks)
    p.valu(f'v_mov_b32 v{V_T+4}, 0x3f803f80', [f'v{V_T+4}'])
    for i in range(4):
        p.valu(f'v_accvgpr_write_b32 a{A_ONE+i}, v{V_T+4}', [f'a{A_ONE+i}'], [f'v{V_T+4}'])
    if not FT:
        for i in range(12):
            p.valu(f'v_mov_b32 v{V_NM+i}, 0', [f'v{V_NM+i}'])

    kr = [0]
    vr = [0]
    kbase = [KBASE[0]]
    vbase = [VBASE[0]]

    def k_frag(st, u, ks):
        J = st >> 1
        sl = KSLOT[J]
        if KBASE[J] != kbase[0]:
            dlt = (KBASE[J] - kbase[0]) * 16384
            kbase[0] = KBASE[J]
            for k2 in range(4):
                p.valu(f'v_add_u32 v{V_KA+k2}, {dlt}, v{V_KA+k2}', [f'v{V_KA+k2}'], [f'v{V_KA+k2}'])
        d = A_KR + (kr[0] % NKR) * 4
        kr[0] += 1
        off = (sl - kbase[0]) * 16384 + (2 * (st & 1) + u) * 1024
        p.raw(f'ds_read_b128 {a(d,4)}, v{V_KA+ks} offset:{off}', 'ds',
              R('a', d, 4) + [f'R:K{J}'], [f'v{V_KA+ks}', f'L:K{J}'], win=DSWIN)
        return d

    def v_frag(st, dt):
        J = st >> 1
        sl = VSLOT[J]
        if VBASE[J] != vbase[0]:
            dlt = (VBASE[J] - vbase[0]) * 16384
            vbase[0] = VBASE[J]
            for k2 in range(8):
                p.valu(f'v_add_u32 v{V_VA+k2}, {dlt}, v{V_VA+k2}', [f'v{V_VA+k2}'], [f'v{V_VA+k2}'])
        d = A_VR + (vr[0] % NVR) * 4
        vr[0] += 1
        for m in range(2):
            off = (sl - vbase[0]) * 16384 + (st & 1) * 2048 + m * 1024
            p.raw(f'ds_read_b64_tr_b16 {a(d+2*m,2)}, v{V_VA+dt} offset:{off}', 'ds',
                  R('a', d + 2 * m, 2) + [f'R:V{J}'], [f'v{V_VA+dt}', f'L:V{J}'], win=DSWIN)
        return d

    def qk(st):
        order = [(u, ks) for ks in range(4) for u in range(2)] if st == 0 else [(u, ks) for u in range(2) for ks in range(4)]
        for u, ks in order:
            d = k_frag(st, u, ks)
            for t in range(3):
                r0 = sreg(st, u, t)
                if ks == 0:
                    c = None if (FT and st <= 1) else ('v', V_NM + 4 * t)
                else:
                    c = ('v', r0)
                p.mfma(('v', r0), ('a', d), ('v', qfrag(ks, t)), c)

    def first_max():
        T = V_T
        for t in range(3):
            rs = [sreg(0, u, t) + i for u in range(2) for i in range(4)]
            m, x = T + 2 * t, T + 2 * t + 1
            p.valu(f'v_max3_f32 v{m}, v{rs[0]}, v{rs[1]}, v{rs[2]}', [f'v{m}'], [f'v{r}' for r in rs[:3]])
            p.valu(f'v_max3_f32 v{m}, v{m}, v{rs[3]}, v{rs[4]}', [f'v{m}'], [f'v{m}'] + [f'v{r}' for r in rs[3:5]])
            p.valu(f'v_max3_f32 v{m}, v{m}, v{rs[5]}, v{rs[6]}', [f'v{m}'], [f'v{m}'] + [f'v{r}' for r in rs[5:7]])
            p.valu(f'v_max_f32 v{m}, v{m}, v{rs[7]}', [f'v{m}'], [f'v{m}', f'v{rs[7]}'])
            for sw in ('v_permlane32_swap_b32', 'v_permlane16_swap_b32'):
                p.valu(f'v_mov_b32 v{x}, v{m}', [f'v{x}'], [f'v{m}'])
                p.valu(f'{sw} v{x}, v{m}', [f'v{x}', f'v{m}'], [f'v{x}', f'v{m}'], kind='perm')
                p.valu(f'v_max_f32 v{m}, v{m}, v{x}', [f'v{m}'], [f'v{m}', f'v{x}'])
            for i in range(4):
                p.valu(f'v_sub_f32 v{V_NM+4*t+i}, 0, v{m}', [f'v{V_NM+4*t+i}'], [f'v{m}'])

    def softmax(st):
        for t in range(3):
            for u in range(2):
                r0 = sreg(st, u, t)
                for i in range(4):
                    if FT and st <= 1:
                        p.valu(f'v_add_f32 v{r0+i}, v{r0+i}, v{V_NM+4*t}', [f'v{r0+i}'], [f'v{r0+i}', f'v{V_NM+4*t}'])
                    p.valu(f'v_exp_f32 v{r0+i}, v{r0+i}', [f'v{r0+i}'], [f'v{r0+i}'], kind='trans')
                for h2 in range(2):
                    d = preg(st, t) + 2 * u + h2
                    p.valu(f'v_cvt_pk_bf16_f32 v{d}, v{r0+2*h2}, v{r0+2*h2+1}', [f'v{d}'], R('v', r0 + 2 * h2, 2))

    def pv(st):
        def lsum():
            for t in range(3):
                p.mfma(('a', A_L + 4 * t), ('a', A_ONE), ('v', preg(st, t)), None if st == 0 else ('a', A_L + 4 * t))
        if st == 15:
            lsum()
            T = V_T
            for t in range(3):
                p.valu(f'v_accvgpr_read_b32 v{T+t}, a{A_L+4*t}', [f'v{T+t}'], [f'a{A_L+4*t}'], prio=HP)
                p.valu(f'v_rcp_f32 v{T+3+t}, v{T+t}', [f'v{T+3+t}'], [f'v{T+t}'], kind='trans', prio=HP)
            LO, HI = (127 - 30) << 23, (127 + 30) << 23
            X = V_NM
            for t in range(3):
                p.valu(f'v_subrev_u32 v{X+t}, {LO:#x}, v{T+t}', [f'v{X+t}'], [f'v{T+t}'], prio=HP)
            p.valu(f'v_max3_u32 v{X}, v{X}, v{X+1}, v{X+2}', [f'v{X}'], R('v', X, 3), prio=HP)
            p.valu(f'v_cmp_lt_u32 vcc, {HI-LO:#x}, v{X}', ['vcc'], [f'v{X}'], prio=HP)
            p.salu('s_or_b32 s7, vcc_lo, vcc_hi', ['s7'], ['vcc'], prio=HP)
            p.valu(f'v_mov_b32 v{X+1}, s7', [f'v{X+1}'], ['s7'], prio=HP)
            p.salu(f's_lshl_b32 s58, s{S_W}, 2', ['s58'], [f's{S_W}'], prio=HP)
            p.valu(f'v_mov_b32 v{X+2}, s58', [f'v{X+2}'], ['s58'], prio=HP)
            p.raw(f'ds_write_b32 v{X+2}, v{X+1} offset:{BADA}', 'dsw', ['W:bad'], [f'v{X+1}', f'v{X+2}', 'F:a7'], prio=HP)
            barrier(p, ['W:bad', 'R:K7'], ['F:ae'], prio=HP)
            p.valu(f'v_mov_b32 v{X+3}, 0', [f'v{X+3}'], prio=HP)
            p.raw(f'ds_read_b128 {v(X+4,4)}, v{X+3} offset:{BADA}', 'ds', R('v', X + 4, 4), [f'v{X+3}', 'F:ae'], prio=HP)
            p.valu(f'v_or3_b32 v{X+4}, v{X+4}, v{X+5}, v{X+6}', [f'v{X+4}'], R('v', X + 4, 3), prio=HP)
            p.valu(f'v_or_b32 v{X+4}, v{X+4}, v{X+7}', [f'v{X+4}'], [f'v{X+4}', f'v{X+7}'], prio=HP)
            p.valu(f'v_readfirstlane_b32 s7, v{X+4}', ['s7'], [f'v{X+4}'], prio=HP)
            p.salu('s_cmp_lg_u32 s7, 0\n  s_cbranch_scc1 L_redo', ['F:ok'], ['s7', 'VMORD:', 'SORD:'], prio=HP)
        for dt in range(8):
            d = v_frag(st, dt)
            for t in range(3):
                acc = oacc(dt, t)
                p.mfma(('v', acc), ('a', d), ('v', preg(st, t)), None if st == 0 else ('v', acc))
            if st == 15 and dt & 1:
                ks = dt >> 1
                for t in range(3):
                    dst = V_S + (ks * 3 + t) * 4
                    for b2 in range(2):
                        r0 = oacc(2 * ks + b2, t)
                        for i in range(4):
                            p.valu(f'v_mul_f32 v{r0+i}, v{V_T+3+t}, v{r0+i}', [f'v{r0+i}'], [f'v{r0+i}', f'v{V_T+3+t}'])
                        for h2 in range(2):
                            p.valu(f'v_cvt_pk_bf16_f32 v{dst+2*b2+h2}, v{r0+2*h2}, v{r0+2*h2+1}', [f'v{dst+2*b2+h2}'],
                                   R('v', r0 + 2 * h2, 2))
                    k = ks * 3 + t
                    so = ['0', f's{S_4K}', f's{S_8K}'][k >> 2]
                    p.raw(f'buffer_store_dwordx4 {v(dst,4)}, v{V_L16}, {s(S_OD,4)}, {so} offen offset:{(k&3)*1024}{STF}', 'vms',
                          ['VMORD:', 'D:ost'], R('v', dst, 4) + [f'v{V_L16}', f's{S_4K}', f's{S_8K}', 'F:ok'] + R('s', S_OD, 4), prio=HP)
        if st != 15:
            lsum()

    flush(10 ** 6)
    have = {None} | {f'F:q{i}' for i in range(8)}

    T = V_T

    def arrive(g):
        p.salu('s_and_b32 s7, s2, 1', ['s7'], ['s2', 'F:a0'])
        p.salu('s_lshl_b32 s7, s7, 7', ['s7'], ['s7'])
        p.valu(f'v_lshl_add_u32 v{T}, v0, 12, s7', [f'v{T}'], ['v0', 's7'])
        p.valu(f'v_mov_b32 v{T+1}, 1', [f'v{T+1}'])
        p.raw(f'buffer_atomic_add v{T+1}, v{T}, {s(S_DB,4)}, 0 offen sc1', 'vms', ['VMORD:'],
              [f'v{T}', f'v{T+1}', 'F:a0'] + R('s', S_DB, 4), prio=HP)
        srd(p, S_WS, 78, f's{S_WSO}', 131072)
        srd(p, S_OS, 78, f's{S_OSO}', 98304)
        srd(p, S_OUT, 74, f's{S_OUTO}', ('1572864', f's{S_OUTO}'))

    def chk_load(g):
        p.valu(f'v_lshlrev_b32 v{T}, 3, v{V_L16}', [f'v{T}'], [f'v{V_L16}'])
        p.raw(f'buffer_load_dword v{T+1}, v{T}, {s(S_DB,4)}, 0 offen sc1', 'vml', [f'v{T+1}', 'VMORD:'], [f'v{T}'] + R('s', S_DB, 4),
              early=g, prio=HP)

    def chk_test(g):
        p.valu(f'v_cmp_le_u32 vcc, 0x80, v{T+1}', ['vcc'], [f'v{T+1}'], early=g, prio=HP)
        p.salu('s_cmp_eq_u32 vcc_lo, 3\n  s_cbranch_scc0 L_chk_slow\nL_chk_ret:', ['F:chk'], ['vcc', f'v{T}', f'v{T+1}'], prio=HP)

    def wo_reg(g, f):
        kk, n = divmod(f, 4)
        if n == 0:
            p.salu(f's_mov_b32 s{S_P0}, {kk*4096}', [f's{S_P0}'], ['F:chk'], early=g - 1, prio=HP)
        d = 64 + 4 * f
        p.raw(f'buffer_load_dwordx4 {a(d,4)}, v{V_WV+n}, {s(S_WS,4)}, s{S_P0} offen sc1', 'vml', R('a', d, 4) + ['VMORD:'],
              [f'v{V_WV+n}', f's{S_P0}', 'F:chk'] + R('s', S_WS, 4), early=g, prio=HP)

    def wo_lds(g, i, j, fr):
        if j == 0:
            p.salu(f's_mov_b32 s{S_P1}, {(NPF+i)*4096}', [f's{S_P1}'], ['F:chk', fr], early=g - 2, prio=HP)
        p.salu(f's_add_u32 m0, s{S_M0K}, {WLSLOT[i]*16384}', ['m0'], [f's{S_M0K}', fr], early=g - 1, prio=HP)
        p.raw(f'buffer_load_dwordx4 v{V_L16}, {s(S_WS,4)}, s{S_P1} offen offset:{j*1024} sc1 lds', 'dma', [f'D:wl{i}', 'VMORD:'],
              [f'v{V_L16}', 'm0', f's{S_P1}', 'F:chk', fr] + R('s', S_WS, 4), early=g, prio=HP)

    av = []
    for g0, (w_, J, fr) in rest:
        for j in range(4):
            av.append((int(g0 + j * stp), fr, lambda g, w_=w_, J=J, j=j, fr=fr:
                       dma_kv(p, w_, J, (KSLOT if w_ == 'K' else VSLOT)[J], fr, (j,), g, 0, j == 0 or NLD > 0)))
    CK = int(E('CK', 540))
    av.append((421, 'F:a0', arrive))
    av.append((CK, None, chk_load))
    av.append((CK + int(E('CKD', 70)), None, chk_test))
    P0, P1 = max(CK + int(E('CKD', 70)) + 6, int(E('PF0', 0))), int(E('PF1', 1000))
    for f in range(4 * NPF):
        av.append((int(P0 + (P1 - P0) * f / (4.0 * NPF)), None, lambda g, f=f: wo_reg(g, f)))
    L0, L1 = int(E('PL0', 900)), int(E('PL1', 1160))
    for i in range(NLD):
        for j in range(4):
            av.append((int(L0 + (L1 - L0) * (4 * i + j) / (4.0 * NLD)), WLFREE[i], lambda g, i=i, j=j: wo_lds(g, i, j, WLFREE[i])))
    av.sort(key=lambda t: t[0])

    def flush_rest(upto):
        keep = []
        blocked = set()
        for it in list(av):
            if it[0] < upto and it[1] in have:
                it[2](it[0])
                av.remove(it)

    flush_rest(372)
    barrier(p, ['D:K0', 'R:wq7'], ['L:K0', 'F:qe'], win=2)
    have.add('F:qe')
    flush_rest(420)
    qk(0)
    if FT:
        first_max()
    softmax(0)
    for st in range(16):
        J = st >> 1
        if st & 1 == 0:
            uses = [f'D:V{J}'] + ([f'D:K{J+1}'] if J < 7 else [])
            uses += [f'R:V{J-1}', f'R:K{J-1}'] if J >= 1 else ['D:wost']
            barrier(p, uses, [f'L:V{J}', f'L:K{J+1}', f'F:a{J}'], win=2)
            have.add(f'F:a{J}')
            flush_rest(420 + 102 * (J + 1) if J < 7 else 10 ** 6)
        if st < 15:
            qk(st + 1)
            softmax(st + 1)
        pv(st)
    assert not av


WLSLOT = [6, 3, 4, 5, 8, 9, 7]
WLFREE = ['F:a4', 'F:a4', 'F:a5', 'F:a5', 'F:a6', 'F:a6', 'F:a7']


def phase4():
    T = V_T
    ACC = 16
    nres = 4 * NPF
    pool = [('a', i) for i in range(64 + 4 * nres, 256, 4)] + [('a', i) for i in range(0, 64, 4)] + \
           [('v', i) for i in range(136, 244, 4)]
    NLR = 8 if NLD else 0
    lring = [pool.pop() for _ in range(NLR)]
    oring = [('v', i) for i in range(64, 136, 4)]
    first = 4 * (NPF + NLD)
    slot = {}
    for f in range(nres):
        slot[f] = ('a', 64 + 4 * f)
    for n_, f in enumerate(range(first, 128)):
        slot[f] = pool[n_] if n_ < len(pool) else slot[n_ - len(pool)]
    so_state = {}

    def wload(p, f, **k):
        kk, n = divmod(f, 4)
        if so_state.get('w') != kk:
            so_state['w'] = kk
            p.salu(f's_mov_b32 s{S_P0}, {kk*4096}', [f's{S_P0}'], prio=HP)
        r = slot[f]
        p.raw(f'buffer_load_dwordx4 {rng(r[0], r[1], 4)}, v{V_WV+n}, {s(S_WS,4)}, s{S_P0} offen sc1', 'vml',
              R(r[0], r[1], 4) + ['VMORD:'], [f'v{V_WV+n}', f's{S_P0}'] + R('s', S_WS, 4), prio=HP, **k)

    def oload(p, kk, t, **k):
        if so_state.get('o') != kk:
            so_state['o'] = kk
            p.salu(f's_mov_b32 s{S_P1}, {kk*3072}', [f's{S_P1}'], prio=HP)
        r = oring[(kk * 3 + t) % len(oring)]
        p.raw(f'buffer_load_dwordx4 {rng(r[0], r[1], 4)}, v{V_L16}, {s(S_OS,4)}, s{S_P1} offen offset:{t*1024} sc1', 'vml',
              R(r[0], r[1], 4) + ['VMORD:'], [f'v{V_L16}', f's{S_P1}'] + R('s', S_OS, 4), prio=HP, **k)

    p = Prog()
    V = p.valu
    NA, NB = int(E('NA', 4)), int(E('NB', 20))
    nxt = first
    barrier(p, [], ['F:p4'])
    for _ in range(NA):
        wload(p, nxt); nxt += 1
    for n in range(4):
        p.salu(f's_add_u32 s7, s{S_W}, {n}', ['s7'], [f's{S_W}'])
        p.salu('s_and_b32 s7, s7, 3', ['s7'], ['s7'])
        p.salu('s_mul_i32 s7, s7, 9216', ['s7'], ['s7'])
        if n:
            p.salu(f's_add_u32 s7, s7, {(n-1)*3072}', ['s7'], ['s7'])
        V(f'v_add_u32 v{8+n}, s7, v{V_L16}', [f'v{8+n}'], ['s7', f'v{V_L16}'])
        p.salu(f's_add_u32 s7, s{S_M0K}, {3*16384}', ['s7'], [f's{S_M0K}'])
        V(f'v_add_u32 v{4+n}, s7, v{V_WV+n}', [f'v{4+n}'], ['s7', f'v{V_WV+n}'])
    V('v_and_b32 v12, 15, v0', ['v12'], ['v0'])
    V('v_lshlrev_b32 v12, 10, v12', ['v12'], ['v12'])
    V('v_bfe_u32 v13, v0, 4, 2', ['v13'], ['v0'])
    V('v_lshl_add_u32 v12, v13, 3, v12', ['v12'], ['v12', 'v13'])
    V(f'v_mov_b32 v{T}, 1', [f'v{T}'])
    p.salu('s_mov_b32 s42, 16384', ['s42'])
    p.salu('s_mov_b32 s43, 32768', ['s43'])
    p.raw(f'buffer_store_dword v{T}, v{V_FW}, {s(S_FL,4)}, 0 offen sc1', 'vms', ['VMORD:'],
          [f'v{T}', f'v{V_FW}', 'D:ost'] + R('s', S_FL, 4))
    stamp(p, NSTAMP - 4)
    for _ in range(min(NB, len(pool) - NA)):
        wload(p, nxt); nxt += 1
    p.salu('s_mov_b32 s58, 0', ['s58'])
    p.raw('L_poll:', 'label')
    p.raw(f'buffer_load_dword v{T+1}, v{V_FP}, {s(S_FL,4)}, 0 offen sc1', 'vml', [f'v{T+1}', 'VMORD:'], [f'v{V_FP}'] + R('s', S_FL, 4))
    V(f'v_cmp_eq_u32 vcc, 1, v{T+1}', ['vcc'], [f'v{T+1}'])
    p.salu('s_add_u32 s58, s58, 1', ['s58'], ['s58'])
    p.salu('s_cmp_eq_u32 vcc_lo, 0xff\n  s_cbranch_scc1 L_go', [], ['vcc'])
    p.salu(f's_cmp_lt_u32 s58, {SPIN}\n  s_cbranch_scc1 L_poll\nL_go:', [], ['s58'])
    stamp(p, NSTAMP - 3)
    NPRE = int(E('NPREO', 4))
    for kk in range(NPRE):
        for t in range(3):
            oload(p, kk, t)
    win = p.ops
    p = Prog()
    lr = [0]
    lbase = [3]
    wq_ = list(range(nxt, 128))
    for kk in range(32):
        for n in range(4):
            f = kk * 4 + n
            if NPF <= kk < NPF + NLD:
                sl = WLSLOT[kk - NPF]
                if not (0 <= sl - lbase[0] <= 3):
                    for k2 in range(4):
                        p.valu(f'v_add_u32 v{4+k2}, {(7 - lbase[0])*16384}, v{4+k2}', [f'v{4+k2}'], [f'v{4+k2}'])
                    lbase[0] = 7
                A = lring[lr[0] % NLR]
                lr[0] += 1
                p.raw(f'ds_read_b128 {rng(A[0], A[1], 4)}, v{4+n} offset:{(sl - lbase[0])*16384}', 'ds', R(A[0], A[1], 4),
                      [f'v{4+n}', f'D:wl{kk-NPF}'], win=14)
            else:
                A = slot[f]
            for t in range(3):
                acc = ACC + (n * 3 + t) * 4
                p.mfma(('v', acc), A, oring[(kk * 3 + t) % len(oring)], None if kk == 0 else ('v', acc))
            if n == 0 and kk + NPRE < 32:
                for t in range(3):
                    oload(p, kk + NPRE, t)
            if n == 3:
                cnt = 0
                while wq_ and cnt < int(E('WPER', 2)) or (wq_ and wq_[0] // 4 <= kk + NPRE + 1):
                    f2 = wq_[0]
                    n2 = f2 - first - len(pool)
                    if n2 >= 0 and n2 // 4 > kk:
                        break
                    wload(p, wq_.pop(0))
                    cnt += 1
    assert not wq_
    body = schedule(p.ops, True, 'p4')
    p = Prog()
    V = p.valu
    stamp(p, NSTAMP - 2)
    for n in range(1, 4):
        for t in range(3):
            acc = ACC + (n * 3 + t) * 4
            p.raw(f'ds_write_b128 v{8+n}, {v(acc,4)} offset:{t*1024}', 'dsw', ['W:red'], [f'v{8+n}'] + R('v', acc, 4))
    barrier(p, ['W:red'], ['L:red'])
    for sl in range(3):
        for t in range(3):
            d = 64 + (sl * 3 + t) * 4
            p.raw(f'ds_read_b128 {v(d,4)}, v8 offset:{(sl*3+t)*1024}', 'ds', R('v', d, 4), ['v8', 'L:red'])
    for t in range(3):
        acc = ACC + t * 4
        for sl in range(3):
            d = 64 + (sl * 3 + t) * 4
            for i in range(4):
                V(f'v_add_f32 v{acc+i}, v{acc+i}, v{d+i}', [f'v{acc+i}'], [f'v{acc+i}', f'v{d+i}'])
        for h2 in range(2):
            V(f'v_cvt_pk_bf16_f32 v{112+2*t+h2}, v{acc+2*h2}, v{acc+2*h2+1}', [f'v{112+2*t+h2}'], R('v', acc + 2 * h2, 2))
        so = ['0', 's42', 's43'][t]
        p.raw(f'buffer_store_dwordx2 {v(112+2*t,2)}, v12, {s(S_OUT,4)}, {so} offen', 'vms', [],
              R('v', 112 + 2 * t, 2) + ['v12', 's42', 's43'] + R('s', S_OUT, 4))
    if STAMP:
        p.raw('s_waitcnt vmcnt(0)', 'wait')
    stamp(p, NSTAMP - 1)
    return win, body, p.ops


def redo_path(L):
    T = V_T
    ko = (KSLOT[7] - KBASE[7]) * 16384
    vo = (VSLOT[7] - VBASE[7]) * 16384

    def drain(p):
        p.raw('s_waitcnt vmcnt(0) lgkmcnt(0)', 'wait')
        p.raw('s_nop 7', 'nop')
        p.raw('s_nop 7', 'nop')

    def stage(p, withv):
        p.raw('s_barrier', 'bar')
        for w_, sl in (('K', KSLOT[7]), ('V', VSLOT[7]))[:1 + withv]:
            S, vo_ = (S_K, V_KD) if w_ == 'K' else (S_V, V_VD)
            p.salu(f's_add_u32 m0, s{S_M0K}, {sl*16384}', ['m0'])
            for j in range(4):
                p.raw(f'buffer_load_dwordx4 v{vo_}, {s(S,4)}, s{S_KVO} offen offset:{j*1024} lds', 'dma', [], ['m0'])
        p.raw('s_waitcnt vmcnt(0)', 'wait')
        p.raw('s_barrier', 'bar')

    def scores(p, uu, dst, c):
        for ks in range(4):
            p.raw(f'ds_read_b128 {a(4*ks,4)}, v{V_KA+ks} offset:{ko + uu*1024}', 'ds', R('a', 4 * ks, 4))
        for ks in range(4):
            for t in range(3):
                p.mfma(('v', dst + 4 * t), ('a', 4 * ks), ('v', qfrag(ks, t)),
                       (c(t) if ks == 0 else ('v', dst + 4 * t)))

    def loop_end(p, lab):
        drain(p)
        p.salu(f's_add_u32 s{S_KVO}, s{S_KVO}, 16384', [f's{S_KVO}'])
        p.salu(f's_cmp_lt_u32 s{S_KVO}, 131072\n  s_cbranch_scc1 {lab}')

    L.append('L_redo:')
    p = Prog()
    drain(p)
    for t in range(3):
        p.valu(f'v_mov_b32 v{T+t}, 0xff800000', [f'v{T+t}'])
    p.salu(f's_mov_b32 s{S_KVO}, 0', [f's{S_KVO}'])
    p.raw('L_redo1:', 'label')
    stage(p, 0)
    for uu in range(4):
        scores(p, uu, V_S, lambda t: None)
        for t in range(3):
            r0 = V_S + 4 * t
            p.valu(f'v_max3_f32 v{T+t}, v{T+t}, v{r0}, v{r0+1}', [f'v{T+t}'], [f'v{T+t}', f'v{r0}', f'v{r0+1}'])
            p.valu(f'v_max3_f32 v{T+t}, v{T+t}, v{r0+2}, v{r0+3}', [f'v{T+t}'], [f'v{T+t}', f'v{r0+2}', f'v{r0+3}'])
    loop_end(p, 'L_redo1')
    for t in range(3):
        m, x = T + t, T + 3
        for sw in ('v_permlane32_swap_b32', 'v_permlane16_swap_b32'):
            p.valu(f'v_mov_b32 v{x}, v{m}', [f'v{x}'], [f'v{m}'])
            p.valu(f'{sw} v{x}, v{m}', [f'v{x}', f'v{m}'], [f'v{x}', f'v{m}'], kind='perm')
            p.valu(f'v_max_f32 v{m}, v{m}, v{x}', [f'v{m}'], [f'v{m}', f'v{x}'])
        for i in range(4):
            p.valu(f'v_sub_f32 v{V_NM+4*t+i}, 0, v{m}', [f'v{V_NM+4*t+i}'], [f'v{m}'])
    for r in range(96):
        p.valu(f'v_mov_b32 v{V_O+r}, 0', [f'v{V_O+r}'])
    for r in range(12):
        p.valu(f'v_accvgpr_write_b32 a{A_L+r}, 0', [f'a{A_L+r}'])
    p.salu(f's_mov_b32 s{S_KVO}, 0', [f's{S_KVO}'])
    drain(p)
    p.raw('L_redo2:', 'label')
    stage(p, 1)
    for e in range(2):
        for u in range(2):
            scores(p, 2 * e + u, V_S + 12 * u, lambda t: ('v', V_NM + 4 * t))
        for t in range(3):
            for u in range(2):
                r0 = V_S + 12 * u + 4 * t
                for i in range(4):
                    p.valu(f'v_exp_f32 v{r0+i}, v{r0+i}', [f'v{r0+i}'], [f'v{r0+i}'], kind='trans')
                for h2 in range(2):
                    d = V_P + 4 * t + 2 * u + h2
                    p.valu(f'v_cvt_pk_bf16_f32 v{d}, v{r0+2*h2}, v{r0+2*h2+1}', [f'v{d}'], R('v', r0 + 2 * h2, 2))
        for t in range(3):
            p.mfma(('a', A_L + 4 * t), ('a', A_ONE), ('v', V_P + 4 * t), ('a', A_L + 4 * t))
        for d0 in (0, 4):
            for dt in range(d0, d0 + 4):
                for m in range(2):
                    d = A_VR + 4 * (dt - d0) + 2 * m
                    p.raw(f'ds_read_b64_tr_b16 {a(d,2)}, v{V_VA+dt} offset:{vo + e*2048 + m*1024}', 'ds', R('a', d, 2))
            for dt in range(d0, d0 + 4):
                for t in range(3):
                    p.mfma(('v', oacc(dt, t)), ('a', A_VR + 4 * (dt - d0)), ('v', V_P + 4 * t), ('v', oacc(dt, t)))
    loop_end(p, 'L_redo2')
    for t in range(3):
        p.valu(f'v_accvgpr_read_b32 v{T+t}, a{A_L+4*t}', [f'v{T+t}'], [f'a{A_L+4*t}'])
        p.valu(f'v_rcp_f32 v{T+3+t}, v{T+t}', [f'v{T+3+t}'], [f'v{T+t}'], kind='trans')
    for ks in range(4):
        for t in range(3):
            dst = V_S + (ks * 3 + t) * 4
            for b2 in range(2):
                r0 = oacc(2 * ks + b2, t)
                for i in range(4):
                    p.valu(f'v_mul_f32 v{r0+i}, v{T+3+t}, v{r0+i}', [f'v{r0+i}'], [f'v{r0+i}', f'v{T+3+t}'])
                for h2 in range(2):
                    p.valu(f'v_cvt_pk_bf16_f32 v{dst+2*b2+h2}, v{r0+2*h2}, v{r0+2*h2+1}', [f'v{dst+2*b2+h2}'],
                           R('v', r0 + 2 * h2, 2))
            k = ks * 3 + t
            so = ['0', f's{S_4K}', f's{S_8K}'][k >> 2]
            p.raw(f'buffer_store_dwordx4 {v(dst,4)}, v{V_L16}, {s(S_OD,4)}, {so} offen offset:{(k&3)*1024}{STF}', 'vms',
                  [], R('v', dst, 4))
    drain(p)
    p.raw('s_branch L_stored', 'salu')
    emit(L, finish(p.ops, 'redo'))
    T = V_T
    L += ['L_chk_slow:', '  s_mov_b32 s58, 0', 'L_chk_loop:', '  s_sleep 2',
          f'  buffer_load_dword v{T+1}, v{T}, {s(S_DB,4)}, 0 offen sc1', '  s_waitcnt vmcnt(0)',
          f'  v_cmp_le_u32 vcc, 0x80, v{T+1}', '  s_add_u32 s58, s58, 1', '  s_nop 3', '  s_cmp_eq_u32 vcc_lo, 3',
          '  s_cbranch_scc1 L_chk_ret', f'  s_cmp_lt_u32 s58, {SPIN}', '  s_cbranch_scc1 L_chk_loop', '  s_branch L_chk_ret']


def finish(ops, name, vmq=None):
    ops, vq, dq = insert_waits(ops, vmq)
    ops, nn = pad_hazards(ops)
    print(f'; {name}: {len(ops)} instrs, est {estimate(ops)} clks, nops {nn}, waits {sum(o.kind == "wait" for o in ops)}',
          file=sys.stderr)
    return ops


def emit(L, ops):
    for o in ops:
        L.append('  ' + o.text)


def stamps_out(L, n, end, wsreg=78, slot0=0):
    if STAMP == 4:
        i = int(E('STI', 1))
        L += ['  s_waitcnt lgkmcnt(0)', f'  s_cmp_lg_u32 s2, {int(E("STWG", 100))}', f'  s_cbranch_scc1 {end}', f'  s_sub_u32 s7, s{80+2*i}, s80', '  s_lshl_b32 s7, s7, 2',
              'L_dly:', '  s_memrealtime s[8:9]', '  s_waitcnt lgkmcnt(0)', f'  s_sub_u32 s10, s8, s{80+2*(n-1)}', '  s_cmp_lt_u32 s10, s7',
              '  s_cbranch_scc1 L_dly']
        return
    if STAMP == 3:
        L += ['  s_waitcnt lgkmcnt(0)', '  v_cmp_eq_u32 vcc, 0, v0', '  s_nop 4', '  s_and_saveexec_b64 s[12:13], vcc', f'  s_cbranch_execz {end}',
              '  v_mov_b32 v2, 0', '  s_not_b32 s7, s80', '  v_mov_b32 v3, s7', f'  buffer_atomic_umax v3, v2, {s(S_DB,4)}, 0 offen offset:4 sc1',
              '  v_mov_b32 v4, s80', f'  buffer_atomic_umax v4, v2, {s(S_DB,4)}, 0 offen offset:8 sc1',
              f'  v_mov_b32 v5, s{80+2*(n-1)}', f'  buffer_atomic_umax v5, v2, {s(S_DB,4)}, 0 offen offset:12 sc1']
        for q in range(1, n):
            L += [f'  s_sub_u32 s7, s{80+2*q}, s80', f'  v_mov_b32 v{6+q}, s7', f'  buffer_atomic_add v{6+q}, v2, {s(S_DB,4)}, 0 offen offset:{12+4*q} sc1']
        L.append('  s_waitcnt vmcnt(0)')
        return
    L += ['  s_waitcnt lgkmcnt(0)',
          f'  s_mov_b32 s8, s{wsreg}', f'  s_mov_b32 s9, s{wsreg+1}', '  s_mov_b32 s10, 0x10000', '  s_mov_b32 s11, 0x20000']
    for r in range(2 * n):
        L.append(f'  v_mov_b32 v{4+r}, s{80+r}')
    L += ['  s_lshl_b32 s7, s2, 7', '  v_mov_b32 v2, s7', f'  v_cmp_eq_u32 vcc, {int(E("STW", 0))*64}, v0', '  s_nop 4',
          '  s_and_saveexec_b64 s[12:13], vcc', f'  s_cbranch_execz {end}']
    for q in range(n):
        L.append(f'  buffer_store_dwordx2 v[{4+2*q}:{5+2*q}], v2, s[8:11], 0 offen offset:{8*(q+slot0)}')
    L.append('  s_waitcnt vmcnt(0)')


def gen_k1(L, name):
    L += [f'.globl {name}', '.p2align 8', f'.type {name},@function', f'{name}:']
    if STAMP:
        L.append('  s_memrealtime s[80:81]' if STAMP != 2 else '  s_memtime s[80:81]')
    L += ['  s_cmp_ge_u32 s2, 256', '  s_cbranch_scc1 L_k1_end']
    if E('SCR'):
        for i, (bit, mask) in enumerate([(0, 42), (1, 21), (2, 50), (3, 7), (4, 41), (5, 14), (0, 28), (3, 33), (6, 5), (7, 19)]):
            L += [f'  s_bitcmp1_b32 s2, {bit}', f'  s_cbranch_scc0 L_scr{i}', f'  s_xor_b32 s2, s2, {mask}', f'L_scr{i}:']
    p = Prog()
    k1_prologue(p)
    dma_wq(p, 0, 0); dma_wq(p, 0, 1)
    for gi in range(3):
        dma_x(p, gi)
    k1_prologue2(p)
    dma_wq(p, 1, 0); dma_wq(p, 1, 1)
    for gi in range(3, NPREX):
        dma_x(p, gi)
    k1_prologue3(p, KBASE[0], VBASE[0])
    if WQPF:
        T = V_T
        p.valu(f'v_bfe_u32 v{T+4}, v0, 1, 4', [f'v{T+4}'], ['v0'])
        p.valu(f'v_and_b32 v{T+5}, 1, v0', [f'v{T+5}'], ['v0'])
        p.valu(f'v_lshlrev_b32 v{T+5}, 7, v{T+5}', [f'v{T+5}'], [f'v{T+5}'])
        p.valu(f'v_lshl_add_u32 v{T+4}, v{T+4}, 13, v{T+5}', [f'v{T+4}'], [f'v{T+4}', f'v{T+5}'])
        p.salu(f's_lshl_b32 s7, s{S_B}, 2', ['s7'], [f's{S_B}'])
        p.salu(f's_add_u32 s7, s7, s{S_W}', ['s7'], ['s7', f's{S_W}'])
        p.salu('s_lshl_b32 s7, s7, 17', ['s7'], ['s7'])
        p.raw(f'buffer_load_dword v{V_S}, v{T+4}, {s(S_WQ,4)}, s7 offen', 'vml', [f'v{V_S}', 'VMORD:'], [f'v{T+4}', 's7'] + R('s', S_WQ, 4))
    if NPREW == 3:
        dma_wq(p, 2, 0); dma_wq(p, 2, 1)
    if int(E('K0G', 20)) < 0:
        dma_kv(p, 'K', 0, KSLOT[0])
    if int(E('WOG', 44)) < 0:
        dma_wo(p, (0, 1, 2, 3))
    pre = p.ops
    p = Prog()
    k1_main(p)
    body = schedule(p.ops, True, 'k1')
    win, body4, epi = phase4()
    lab = [Op('L_stored:', 'label')]
    emit(L, finish(pre + body + lab + win + body4 + epi, 'main'))
    if STAMP:
        stamps_out(L, NSTAMP, 'L_k1_end')
    L += ['L_k1_end:', '  s_endpgm', 'L_codeend:']
    redo_path(L)


def desc(L, name):
    L += ['.section .rodata,"a"', '.p2align 6', f'.amdhsa_kernel {name}', '  .amdhsa_next_free_vgpr 512',
          '  .amdhsa_next_free_sgpr 102', '  .amdhsa_accum_offset 256', '  .amdhsa_group_segment_fixed_size 0',
          '  .amdhsa_kernarg_size 64', '  .amdhsa_user_sgpr_count 2', '  .amdhsa_user_sgpr_kernarg_segment_ptr 1',
          '  .amdhsa_system_sgpr_workgroup_id_x 1', '.end_amdhsa_kernel']


def main():
    out = sys.argv[1]
    L = ['; @launch grid=(256,1,1) block=(256,1,1) lds=163840',
         '.amdgcn_target "amdgcn-amd-amdhsa--gfx950"', '.text']
    gen_k1(L, KNAME)
    desc(L, KNAME)
    open(out, 'w').write('\n'.join(L) + '\n')


if __name__ == '__main__':
    main()
```

```python
import sys, os, struct, math
from sched import *
import sched

KNAME = 'standalone__mha_block_cached__near_ridge_kernel'
E = os.environ.get
KVF = {'0': '', 'nt': ' nt'}[E('KVF', 'nt')]
XF = {'0': '', 'nt': ' nt', 'sc1': ' sc1'}[E('XF', '0')]
WQF = {'0': '', 'nt': ' nt', 'sc1': ' sc1'}[E('WQF', '0')]
WOF = {'0': '', 'nt': ' nt'}[E('WOF', 'nt')]
STF = {'0': '', 'sc1': ' sc1'}[E('STF', 'sc1')]
FT = int(E('FT', 0))
STAMP = int(E('STAMP', 0))
ROT = int(E('ROT', -1))
NPREX = int(E('NPREX', 6))
NPREW = int(E('NPREW', 2))
WOREL = int(E('WOREL', 5))
XREL = int(E('XREL', 7))
WQPF = int(E('WQPF', 1))
KROT = int(E('KROT', 0))
CODEPF = int(E('CODEPF', 2))
XLIN = int(E('XLIN', 0))
SH = 0 if int(E('NOSHIFT', 0)) else 8
NOX = int(E('NOX', 0))

WOFF = 0x100000
OOFF = 0x600000
FOFF = 0x80000
NPF = int(E('NPF', 7))
NLD = int(E('NLD', 0))
SPIN = 200000
SCALE = struct.unpack('<I', struct.pack('<f', math.log2(math.e) / math.sqrt(128.0)))[0]


def v(i, n=1): return rng('v', i, n)
def a(i, n=1): return rng('a', i, n)
def s(i, n=1): return rng('s', i, n)


class Prog:
    def __init__(self):
        self.ops = []

    def add(self, op):
        self.ops.append(op)
        return op

    def salu(self, text, defs=(), uses=(), **k):
        d = list(defs) + ['SORD:']
        if not text.startswith(('s_mov', 's_mul', 's_load', 's_getpc', 's_cselect')):
            d.append('scc')
        return self.add(Op(text, 'salu', d, uses, **k))

    def valu(self, text, defs=(), uses=(), kind='valu', **k):
        return self.add(Op(text, kind, defs, uses, **k))

    def mfma(self, d, A, B, c):
        dr = R(d[0], d[1], 4)
        cr = R(c[0], c[1], 4) if c else []
        ct = rng(c[0], c[1], 4) if c else '0'
        t = f'v_mfma_f32_16x16x32_bf16 {rng(d[0], d[1], 4)}, {rng(A[0], A[1], 4)}, {rng(B[0], B[1], 4)}, {ct}'
        return self.add(Op(t, 'mfma', dr, R(A[0], A[1], 4) + R(B[0], B[1], 4) + cr, cr))

    def raw(self, text, kind='other', defs=(), uses=(), **k):
        return self.add(Op(text, kind, defs, uses, **k))


V_L16 = 1
V_KD, V_VD = 2, 3
V_KA = 4
V_VA = 8
V_O = 16
V_Q = 112
V_S = 160
V_P = 208
V_NM = 232
V_T = 244
V_WA = V_P
V_XO = V_P + 4
V_XA = V_P + 6
V_WD = V_P + 8
V_OD = V_P + 12
V_OA = V_P + 16
A_X = 0
A_WR = 192; NWR = 12
A_WO = 240
A_KR = 0; NKR = 6
A_VR = 24; NVR = 6
A_L = 48
A_ONE = 60

S_X, S_WQ, S_K, S_V, S_WO, S_OD, S_WD = 8, 12, 16, 20, 24, 28, 32
S_XO, S_WQO = 40, 48
S_M0W, S_M0K, S_KVO, S_SC, S_4K, S_8K = 36, 37, 38, 39, 56, 57
S_M0X, S_XS = 61, 62
NXG = 6
WQE = NXG * 8192
WQO = WQE + 24576 + 8
S_B, S_H, S_ROT, S_W = 4, 5, 6, 3
S_FL, S_DB = 64, 68
S_WS, S_OS, S_OUT = 8, 12, 24
S_OSO, S_WSO, S_OUTO = 59, 60, 63
S_P0, S_P1 = 40, 41
V_WV = 250
V_FW, V_FP = 254, 255
BADA = 0


def srd(p, base, lo_src, off, nrec):
    if off is None:
        p.salu(f's_mov_b32 s{base}, s{lo_src}', [f's{base}'], [f's{lo_src}'])
        p.salu(f's_mov_b32 s{base+1}, s{lo_src+1}', [f's{base+1}'], [f's{lo_src+1}'])
    else:
        p.salu(f's_add_u32 s{base}, s{lo_src}, {off}', [f's{base}'], [f's{lo_src}', off])
        p.salu(f's_addc_u32 s{base+1}, s{lo_src+1}, 0', [f's{base+1}'], [f's{lo_src+1}', 'scc'])
    if isinstance(nrec, int):
        p.salu(f's_mov_b32 s{base+2}, {nrec}', [f's{base+2}'])
    else:
        p.salu(f's_sub_u32 s{base+2}, {nrec[0]}, {nrec[1]}', [f's{base+2}'], [nrec[1]])
    p.salu(f's_mov_b32 s{base+3}, 0x20000', [f's{base+3}'])


STG = [int(x) for x in E('STG', '0,96,240,372,624,1032,1190').split(',')]
NSTAMP = len(STG) + 5


def stamp(p, i, early=None):
    if STAMP:
        p.raw(f's_mem{"real" if STAMP != 2 else ""}time s[{80+2*i}:{81+2*i}]', 'salu', [f's{80+2*i}', f's{81+2*i}'], [],
              prio=10**6, early=early)


def k1_prologue(p):
    T = V_T
    p.raw('s_load_dwordx8 s[64:71], s[0:1], 0', 'salu', R('s', 64, 8))
    p.raw('s_load_dwordx8 s[72:79], s[0:1], 32', 'salu', R('s', 72, 8))
    V = p.valu
    if CODEPF:
        p.raw('s_getpc_b64 s[28:29]', 'salu', ['s28', 's29'])
        p.raw('L_pc:', 'label')
        p.salu('s_mov_b32 s30, L_codeend - L_pc', ['s30'])
        p.salu('s_mov_b32 s31, 0x20000', ['s31'])
        V(f'v_lshlrev_b32 v{T+4}, 7, v0', [f'v{T+4}'], ['v0'])
        for i in range(CODEPF):
            if i:
                V(f'v_add_u32 v{T+4}, 32768, v{T+4}', [f'v{T+4}'], [f'v{T+4}'])
            p.raw(f'buffer_load_dword v{V_S+1+i}, v{T+4}, s[28:31], 0 offen', 'vml', [f'v{V_S+1+i}', 'VMORD:'], [f'v{T+4}'] + R('s', 28, 4))
    V(f'v_lshrrev_b32 v{T}, 6, v0', [f'v{T}'], ['v0'])
    V(f'v_and_b32 v{T+1}, 63, v0', [f'v{T+1}'], ['v0'])
    V(f'v_readfirstlane_b32 s{S_W}, v{T}', [f's{S_W}'], [f'v{T}'])
    V(f'v_lshrrev_b32 v{T+2}, 4, v{T+1}', [f'v{T+2}'], [f'v{T+1}'])
    V(f'v_and_b32 v{T+3}, 15, v0', [f'v{T+3}'], ['v0'])
    V(f'v_lshlrev_b32 v{V_L16}, 4, v{T+1}', [f'v{V_L16}'], [f'v{T+1}'])
    p.salu('s_and_b32 s7, s2, 7', ['s7'], ['s2'])
    p.salu(f's_lshl_b32 s{S_H}, s7, 2', [f's{S_H}'], ['s7'])
    p.salu('s_bfe_u32 s58, s2, 0x20003', ['s58'], ['s2'])
    p.salu(f's_add_u32 s{S_H}, s{S_H}, s58', [f's{S_H}'], [f's{S_H}', 's58'])
    p.salu(f's_lshr_b32 s{S_B}, s2, 5', [f's{S_B}'], ['s2'])
    if ROT:
        p.salu(f's_lshl_b32 s58, s58, 1', ['s58'], ['s58'])
        p.salu(f's_add_u32 s{S_ROT}, s58, s{S_B}', [f's{S_ROT}'], ['s58', f's{S_B}'])
    else:
        p.salu(f's_mov_b32 s{S_ROT}, 0', [f's{S_ROT}'])
    if ROT == -1:
        p.salu(f's_and_b32 s{S_ROT}, s2, 7', [f's{S_ROT}'], ['s2'])
    if ROT >= 2:
        p.salu(f's_lshr_b32 s58, s58, 1', ['s58'], ['s58'])
        p.salu(f's_xor_b32 s{S_ROT}, s58, s{S_B}', [f's{S_ROT}'], ['s58', f's{S_B}'])
        p.salu(f's_and_b32 s{S_ROT}, s{S_ROT}, {ROT-1}', [f's{S_ROT}'], [f's{S_ROT}'])
    for i in range(8):
        if ROT >= 2:
            p.salu(f's_xor_b32 s{S_XO+i}, s{S_ROT}, {i}', [f's{S_XO+i}'], [f's{S_ROT}'])
        else:
            p.salu(f's_add_u32 s{S_XO+i}, s{S_ROT}, {i}', [f's{S_XO+i}'], [f's{S_ROT}'])
            p.salu(f's_and_b32 s{S_XO+i}, s{S_XO+i}, 7', [f's{S_XO+i}'], [f's{S_XO+i}'])
        p.salu(f's_lshl_b32 s{S_WQO+i}, s{S_XO+i}, 19', [f's{S_WQO+i}'], [f's{S_XO+i}'])
        p.salu(f's_lshl_b32 s{S_XO+i}, s{S_XO+i}, 7', [f's{S_XO+i}'], [f's{S_XO+i}'])
    p.salu(f's_lshl_b32 s{S_M0W}, s{S_W}, 11', [f's{S_M0W}'], [f's{S_W}'])
    p.salu(f's_lshl_b32 s{S_M0K}, s{S_W}, 12', [f's{S_M0K}'], [f's{S_W}'])
    p.salu(f's_mul_i32 s{S_M0X}, s{S_W}, {NXG*2048}', [f's{S_M0X}'], [f's{S_W}'])
    p.salu(f's_lshl_b32 s7, s{S_W}, 17', ['s7'], [f's{S_W}'])
    V(f'v_lshlrev_b32 v{T+4}, 2, v{T+2}', [f'v{T+4}'], [f'v{T+2}'])
    V(f'v_xor_b32 v{T+4}, v{T+4}, v{T+3}', [f'v{T+4}'], [f'v{T+4}', f'v{T+3}'])
    V(f'v_lshlrev_b32 v{T+4}, 4, v{T+4}', [f'v{T+4}'], [f'v{T+4}'])
    V(f'v_lshl_add_u32 v{T+4}, v{T+2}, 13, v{T+4}', [f'v{T+4}'], [f'v{T+4}', f'v{T+2}'])
    V(f'v_add_u32 v{V_WD}, s7, v{T+4}', [f'v{V_WD}'], [f'v{T+4}', 's7'])
    for j in range(1, 4):
        V(f'v_add_u32 v{V_WD+j}, {j*32768 - (j&1)*1024}, v{V_WD}', [f'v{V_WD+j}'], [f'v{V_WD}'])
    p.salu(f's_mul_i32 s58, s{S_W}, 49152', ['s58'], [f's{S_W}'])
    V(f'v_and_b32 v{T+5}, 7, v0', [f'v{T+5}'], ['v0'])
    V(f'v_xor_b32 v{T+5}, v{T+5}, v{T+2}', [f'v{T+5}'], [f'v{T+5}', f'v{T+2}'])
    V(f'v_lshlrev_b32 v{T+5}, 4, v{T+5}', [f'v{T+5}'], [f'v{T+5}'])
    V(f'v_bfe_u32 v{T+6}, v0, 3, 3', [f'v{T+6}'], ['v0'])
    V(f'v_lshl_add_u32 v{T+5}, v{T+6}, 10, v{T+5}', [f'v{T+5}'], [f'v{T+5}', f'v{T+6}'])
    V(f'v_add_u32 v{V_XO}, s58, v{T+5}', [f'v{V_XO}'], [f'v{T+5}', 's58'])
    V(f'v_xor_b32 v{V_XO+1}, 64, v{V_XO}', [f'v{V_XO+1}'], [f'v{V_XO}'])
    V(f'v_add_u32 v{V_XO+1}, 7168, v{V_XO+1}', [f'v{V_XO+1}'], [f'v{V_XO+1}'])
    p.raw('s_waitcnt lgkmcnt(0)', 'wait', [], R('s', 64, 16))
    p.salu(f's_lshl_b32 s7, s{S_H}, 8', ['s7'], [f's{S_H}'])
    srd(p, S_WQ, 70, 's7', ('0x400000', 's7'))
    p.salu(f's_mul_i32 s7, s{S_B}, 196608', ['s7'], [f's{S_B}'])
    srd(p, S_X, 64, 's7', 196608)


def k1_prologue2(p):
    T = V_T
    V = p.valu
    p.salu(f's_lshl_b32 s7, s{S_B}, 5', ['s7'], [f's{S_B}'])
    p.salu(f's_add_u32 s7, s7, s{S_H}', ['s7'], ['s7', f's{S_H}'])
    p.salu('s_lshl_b32 s7, s7, 17', ['s7'], ['s7'])
    if KROT == 1:
        p.salu(f's_lshl_b32 s{S_ROT}, s2, 11', [f's{S_ROT}'], ['s2'])
    elif KROT == 2:
        p.salu(f's_lshr_b32 s58, s2, 3', ['s58'], ['s2'])
        p.salu(f's_add_u32 s58, s58, s2', ['s58'], ['s2', 's58'])
        p.salu(f's_lshr_b32 s{S_ROT}, s2, 6', [f's{S_ROT}'], ['s2'])
        p.salu(f's_add_u32 s58, s58, s{S_ROT}', ['s58'], ['s58', f's{S_ROT}'])
        p.salu(f's_lshl_b32 s{S_ROT}, s58, 14', [f's{S_ROT}'], ['s58'])
    elif KROT == 3:
        p.salu(f's_lshl_b32 s{S_ROT}, s2, 14', [f's{S_ROT}'], ['s2'])
    srd(p, S_K, 66, 's7', 131072)
    srd(p, S_V, 68, 's7', 131072)
    p.salu(f's_lshl_b32 s58, s{S_W}, 2', ['s58'], [f's{S_W}'])
    V(f'v_add_u32 v{T+4}, s58, v{T+2}', [f'v{T+4}'], [f'v{T+2}', 's58'])
    V(f'v_xor_b32 v{T+4}, v{T+4}, v{T+3}', [f'v{T+4}'], [f'v{T+4}', f'v{T+3}'])
    V(f'v_lshlrev_b32 v{T+5}, 8, v{T+2}', [f'v{T+5}'], [f'v{T+2}'])
    V(f'v_add_u32 v{T+5}, s{S_M0K}, v{T+5}', [f'v{T+5}'], [f'v{T+5}', f's{S_M0K}'])
    V(f'v_lshl_add_u32 v{V_KD}, v{T+4}, 4, v{T+5}', [f'v{V_KD}'], [f'v{T+4}', f'v{T+5}'])
    p.salu(f's_and_b32 s58, s{S_W}, 1', ['s58'], [f's{S_W}'])
    p.salu('s_lshl_b32 s58, s58, 2', ['s58'], ['s58'])
    V(f'v_add_u32 v{T+4}, s58, v{T+2}', [f'v{T+4}'], [f'v{T+2}', 's58'])
    V(f'v_lshlrev_b32 v{T+4}, 1, v{T+4}', [f'v{T+4}'], [f'v{T+4}'])
    V(f'v_xor_b32 v{T+4}, v{T+4}, v{T+3}', [f'v{T+4}'], [f'v{T+4}', f'v{T+3}'])
    V(f'v_lshl_add_u32 v{V_VD}, v{T+4}, 4, v{T+5}', [f'v{V_VD}'], [f'v{T+4}', f'v{T+5}'])
    V(f'v_bfe_u32 v{T+6}, v0, 2, 2', [f'v{T+6}'], ['v0'])
    V(f'v_and_b32 v{T+7}, 3, v0', [f'v{T+7}'], ['v0'])
    V(f'v_and_b32 v{T+8}, 1, v{T+2}', [f'v{T+8}'], [f'v{T+2}'])
    V(f'v_lshrrev_b32 v{T+4}, 1, v{T+3}', [f'v{T+4}'], [f'v{T+3}'])
    V(f'v_xor_b32 v{T+4}, v{T+4}, v{T+2}', [f'v{T+4}'], [f'v{T+4}', f'v{T+2}'])
    V(f'v_lshlrev_b32 v{T+4}, 4, v{T+4}', [f'v{T+4}'], [f'v{T+4}'])
    V(f'v_lshl_add_u32 v{T+4}, v{T+3}, 7, v{T+4}', [f'v{T+4}'], [f'v{T+4}', f'v{T+3}'])
    V(f'v_add_u32 v{V_XA}, s{S_M0X}, v{T+4}', [f'v{V_XA}'], [f'v{T+4}', f's{S_M0X}'])
    V(f'v_xor_b32 v{V_XA+1}, 64, v{V_XA}', [f'v{V_XA+1}'], [f'v{V_XA}'])
    V(f'v_lshrrev_b32 v{T+4}, 1, v{T+2}', [f'v{T+4}'], [f'v{T+2}'])
    V(f'v_lshlrev_b32 v{T+4}, 11, v{T+4}', [f'v{T+4}'], [f'v{T+4}'])
    V(f'v_mul_u32_u24 v{T+5}, {WQO-WQE}, v{T+8}', [f'v{T+5}'], [f'v{T+8}'])
    V(f'v_add_u32 v{T+4}, v{T+4}, v{T+5}', [f'v{T+4}'], [f'v{T+4}', f'v{T+5}'])
    V(f'v_add_u32 v{T+4}, {WQE}, v{T+4}', [f'v{T+4}'], [f'v{T+4}'])
    V(f'v_lshl_add_u32 v{T+4}, v{T+6}, 8, v{T+4}', [f'v{T+4}'], [f'v{T+4}', f'v{T+6}'])
    V(f'v_lshl_add_u32 v{T+4}, v{T+7}, 4, v{T+4}', [f'v{T+4}'], [f'v{T+4}', f'v{T+7}'])
    for ks in range(4):
        V(f'v_xor_b32 v{T+5}, {ks}, v{T+6}', [f'v{T+5}'], [f'v{T+6}'])
        V(f'v_lshl_add_u32 v{V_WA+ks}, v{T+5}, 6, v{T+4}', [f'v{V_WA+ks}'], [f'v{T+5}', f'v{T+4}'])


def k1_prologue3(p, kslot0, vslot0):
    T = V_T
    V = p.valu
    V(f'v_lshlrev_b32 v{T+4}, 8, v{T+7}', [f'v{T+4}'], [f'v{T+7}'])
    V(f'v_lshl_add_u32 v{T+4}, v{T+6}, 12, v{T+4}', [f'v{T+4}'], [f'v{T+4}', f'v{T+6}'])
    V(f'v_add_u32 v{T+4}, {kslot0*16384}, v{T+4}', [f'v{T+4}'], [f'v{T+4}'])
    for ks in range(4):
        V(f'v_add_u32 v{T+5}, {4*ks}, v{T+2}', [f'v{T+5}'], [f'v{T+2}'])
        V(f'v_xor_b32 v{T+5}, v{T+5}, v{T+3}', [f'v{T+5}'], [f'v{T+5}', f'v{T+3}'])
        V(f'v_lshl_add_u32 v{V_KA+ks}, v{T+5}, 4, v{T+4}', [f'v{V_KA+ks}'], [f'v{T+5}', f'v{T+4}'])
    V(f'v_lshlrev_b32 v{T+4}, 12, v{T+2}', [f'v{T+4}'], [f'v{T+2}'])
    V(f'v_lshl_add_u32 v{T+4}, v{T+6}, 8, v{T+4}', [f'v{T+4}'], [f'v{T+4}', f'v{T+6}'])
    V(f'v_and_b32 v{T+5}, 1, v0', [f'v{T+5}'], ['v0'])
    V(f'v_lshl_add_u32 v{T+4}, v{T+5}, 3, v{T+4}', [f'v{T+4}'], [f'v{T+4}', f'v{T+5}'])
    V(f'v_add_u32 v{T+4}, {vslot0*16384}, v{T+4}', [f'v{T+4}'], [f'v{T+4}'])
    V(f'v_lshl_add_u32 v{T+9}, v{T+8}, 2, v{T+6}', [f'v{T+9}'], [f'v{T+8}', f'v{T+6}'])
    V(f'v_lshlrev_b32 v{T+9}, 1, v{T+9}', [f'v{T+9}'], [f'v{T+9}'])
    V(f'v_bfe_u32 v{T+10}, v0, 1, 1', [f'v{T+10}'], ['v0'])
    V(f'v_or_b32 v{T+9}, v{T+9}, v{T+10}', [f'v{T+9}'], [f'v{T+9}', f'v{T+10}'])
    for dt in range(8):
        V(f'v_xor_b32 v{T+5}, {2*dt}, v{T+9}', [f'v{T+5}'], [f'v{T+9}'])
        V(f'v_lshl_add_u32 v{V_VA+dt}, v{T+5}, 4, v{T+4}', [f'v{V_VA+dt}'], [f'v{T+5}', f'v{T+4}'])
    V(f'v_bfe_u32 v{T+4}, v0, 3, 3', [f'v{T+4}'], ['v0'])
    V(f'v_and_b32 v{T+5}, 7, v0', [f'v{T+5}'], ['v0'])
    V(f'v_lshlrev_b32 v{T+11}, 1, v{T+2}', [f'v{T+11}'], [f'v{T+2}'])
    V(f'v_xor_b32 v{T+5}, v{T+5}, v{T+11}', [f'v{T+5}'], [f'v{T+5}', f'v{T+11}'])
    V(f'v_lshlrev_b32 v{T+5}, 4, v{T+5}', [f'v{T+5}'], [f'v{T+5}'])
    V(f'v_lshl_add_u32 v{V_OD}, v{T+4}, 10, v{T+5}', [f'v{V_OD}'], [f'v{T+4}', f'v{T+5}'])
    for j in range(1, 4):
        V(f'v_add_u32 v{V_OD+j}, {j*7168}, v{V_OD}', [f'v{V_OD+j}'], [f'v{V_OD}'])
    V(f'v_lshl_add_u32 v{T+4}, v{T+2}, 2, v{T+6}', [f'v{T+4}'], [f'v{T+2}', f'v{T+6}'])
    V(f'v_and_b32 v{T+5}, 6, v{T+4}', [f'v{T+5}'], [f'v{T+4}'])
    V(f'v_or_b32 v{T+5}, v{T+5}, v{T+10}', [f'v{T+5}'], [f'v{T+5}', f'v{T+10}'])
    V(f'v_lshlrev_b32 v{T+4}, 7, v{T+4}', [f'v{T+4}'], [f'v{T+4}'])
    V(f'v_and_b32 v{T+11}, 1, v0', [f'v{T+11}'], ['v0'])
    V(f'v_lshl_add_u32 v{T+4}, v{T+11}, 3, v{T+4}', [f'v{T+4}'], [f'v{T+4}', f'v{T+11}'])
    V(f'v_add_u32 v{T+4}, s{S_M0K}, v{T+4}', [f'v{T+4}'], [f'v{T+4}', f's{S_M0K}'])
    V(f'v_add_u32 v{T+4}, {WOSLOT*16384}, v{T+4}', [f'v{T+4}'], [f'v{T+4}'])
    for n4 in range(4):
        V(f'v_xor_b32 v{T+11}, {2*n4}, v{T+5}', [f'v{T+11}'], [f'v{T+5}'])
        V(f'v_lshl_add_u32 v{V_OA+n4}, v{T+11}, 4, v{T+4}', [f'v{V_OA+n4}'], [f'v{T+11}', f'v{T+4}'])
    p.salu('s_lshr_b32 s58, s2, 3', ['s58'], ['s2'])
    p.salu('s_lshl_b32 s58, s58, 2', ['s58'], ['s58'])
    p.salu(f's_add_u32 s58, s58, s{S_W}', ['s58'], ['s58', f's{S_W}'])
    p.salu('s_and_b32 s59, s2, 7', ['s59'], ['s2'])
    p.salu('s_lshl_b32 s7, s58, 15', ['s7'], ['s58'])
    p.salu('s_lshl_b32 s60, s59, 7', ['s60'], ['s59'])
    p.salu('s_add_u32 s7, s7, s60', ['s7'], ['s7', 's60'])
    srd(p, S_WO, 72, 's7', ('0x400000', 's7'))
    p.salu('s_add_u32 s7, s60, s58', ['s7'], ['s60', 's58'])
    p.salu('s_lshl_b32 s7, s7, 12', ['s7'], ['s7'])
    p.salu(f's_add_u32 s7, s7, {WOFF}', ['s7'], ['s7'])
    srd(p, S_WD, 78, 's7', 4096)
    p.salu(f's_lshl_b32 s7, s{S_B}, 2', ['s7'], [f's{S_B}'])
    p.salu(f's_add_u32 s7, s7, s{S_W}', ['s7'], ['s7', f's{S_W}'])
    p.salu('s_lshl_b32 s7, s7, 5', ['s7'], ['s7'])
    p.salu(f's_add_u32 s7, s7, s{S_H}', ['s7'], ['s7', f's{S_H}'])
    p.salu('s_mul_i32 s7, s7, 12288', ['s7'], ['s7'])
    p.salu(f's_add_u32 s7, s7, {OOFF}', ['s7'], ['s7'])
    srd(p, S_OD, 78, 's7', 12288)
    p.salu(f's_lshl_b32 s7, s{S_B}, 2', ['s7'], [f's{S_B}'])
    p.salu(f's_add_u32 s7, s7, s{S_W}', ['s7'], ['s7', f's{S_W}'])
    p.salu('s_lshl_b32 s7, s7, 5', ['s7'], ['s7'])
    p.salu(f's_add_u32 s7, s7, s{S_H}', ['s7'], ['s7', f's{S_H}'])
    p.salu('s_lshl_b32 s7, s7, 7', ['s7'], ['s7'])
    V(f'v_lshl_add_u32 v{V_FW}, v{T+1}, 20, s7', [f'v{V_FW}'], [f'v{T+1}', 's7'])
    p.salu(f's_mov_b32 s7, {FOFF}', ['s7'])
    srd(p, S_FL, 78, 's7', 131072)
    srd(p, S_DB, 76, None, 256)
    p.salu('s_and_b32 s58, s2, 6', ['s58'], ['s2'])
    p.salu('s_bfe_u32 s7, s2, 0x10003', ['s7'], ['s2'])
    p.salu('s_add_u32 s58, s58, s7', ['s58'], ['s58', 's7'])
    p.salu('s_lshl_b32 s58, s58, 2', ['s58'], ['s58'])
    p.salu('s_bfe_u32 s7, s2, 0x20004', ['s7'], ['s2'])
    p.salu('s_add_u32 s58, s58, s7', ['s58'], ['s58', 's7'])
    p.salu(f's_mul_i32 s{S_OUTO}, s58, 49152', [f's{S_OUTO}'], ['s58'])
    p.salu('s_lshl_b32 s58, s58, 2', ['s58'], ['s58'])
    p.salu(f's_add_u32 s58, s58, s{S_W}', ['s58'], ['s58', f's{S_W}'])
    p.salu(f's_mul_i32 s{S_OSO}, s58, 98304', [f's{S_OSO}'], ['s58'])
    p.salu(f's_add_u32 s{S_OSO}, s{S_OSO}, {OOFF}', [f's{S_OSO}'], [f's{S_OSO}'])
    p.salu('s_lshl_b32 s58, s58, 10', ['s58'], ['s58'])
    V(f'v_lshrrev_b32 v{T+4}, 3, v{T+1}', [f'v{T+4}'], [f'v{T+1}'])
    V(f'v_lshl_add_u32 v{T+4}, v{T+4}, 20, s58', [f'v{T+4}'], [f'v{T+4}', 's58'])
    V(f'v_lshl_add_u32 v{V_FP}, v{T+1}, 7, v{T+4}', [f'v{V_FP}'], [f'v{T+1}', f'v{T+4}'])
    p.salu('s_and_b32 s58, s2, 1', ['s58'], ['s2'])
    p.salu('s_lshl_b32 s58, s58, 2', ['s58'], ['s58'])
    p.salu('s_lshr_b32 s7, s2, 6', ['s7'], ['s2'])
    p.salu('s_add_u32 s58, s58, s7', ['s58'], ['s58', 's7'])
    p.salu('s_lshl_b32 s58, s58, 2', ['s58'], ['s58'])
    p.salu(f's_add_u32 s58, s58, s{S_W}', ['s58'], ['s58', f's{S_W}'])
    p.salu(f's_lshl_b32 s{S_WSO}, s58, 17', [f's{S_WSO}'], ['s58'])
    p.salu(f's_add_u32 s{S_WSO}, s{S_WSO}, {WOFF}', [f's{S_WSO}'], [f's{S_WSO}'])
    p.salu('s_lshl_b32 s58, s58, 5', ['s58'], ['s58'])
    p.salu(f's_add_u32 s{S_OUTO}, s{S_OUTO}, s58', [f's{S_OUTO}'], [f's{S_OUTO}', 's58'])
    for n in range(4):
        p.salu(f's_add_u32 s7, s{S_W}, {n}', ['s7'], [f's{S_W}'])
        p.salu('s_and_b32 s7, s7, 3', ['s7'], ['s7'])
        p.salu('s_lshl_b32 s7, s7, 10', ['s7'], ['s7'])
        V(f'v_add_u32 v{V_WV+n}, s7, v{V_L16}', [f'v{V_WV+n}'], ['s7', f'v{V_L16}'])
    V(f'v_mov_b32 v{T+4}, 0', [f'v{T+4}'])
    p.raw(f'buffer_store_dword v{T+4}, v{V_FW}, {s(S_FL,4)}, 0 offen sc1', 'vms', ['VMORD:'], [f'v{T+4}', f'v{V_FW}'] + R('s', S_FL, 4))
    p.salu(f's_mov_b32 s{S_SC}, {SCALE:#x}', [f's{S_SC}'])
    p.salu(f's_mov_b32 s{S_4K}, 4096', [f's{S_4K}'])
    p.salu(f's_mov_b32 s{S_8K}, 8192', [f's{S_8K}'])


HP = 10 ** 5


def dma_wq(p, pos, half, free=None, early=None):
    u = [free] if free else []
    k = dict(prio=HP, early=None if early is None else early - 1)
    p.salu(f's_add_u32 m0, s{S_M0W}, {(WQO if half else WQE) + (pos % 3) * 8192}', ['m0'], [f's{S_M0W}'] + u, **k)
    for j in range(2):
        p.raw(f'buffer_load_dwordx4 v{V_WD+2*half+j}, {s(S_WQ,4)}, s{S_WQO+pos} offen offset:{j*1024}{WQF} lds', 'dma',
              [f'D:wq{pos}', 'VMORD:'], [f'v{V_WD+2*half+j}', 'm0', f's{S_WQO+pos}'] + R('s', S_WQ, 4) + u, prio=HP, early=early)


def dma_x(p, gi, early=None):
    pos, t = divmod(gi, 3)
    u = [f'R:x{gi-NXG}'] if gi >= NXG else []
    k = dict(prio=HP, early=None if early is None else early - 2)
    p.salu(f's_add_u32 m0, s{S_M0X}, {(gi % NXG) * 2048}', ['m0'], [f's{S_M0X}'], **k)
    p.salu(f's_add_u32 s{S_XS}, s{S_XO+pos}, {t*16384}', [f's{S_XS}'], [f's{S_XO+pos}'], **k)
    for j in range(2):
        p.raw(f'buffer_load_dwordx4 v{V_XO+j}, {s(S_X,4)}, s{S_XS} offen offset:{j*1024}{XF} lds', 'dma',
              [f'D:x{gi}', 'VMORD:'], [f'v{V_XO+j}', 'm0', f's{S_XS}'] + R('s', S_X, 4) + u, prio=HP, early=early)


def read_x(p, gi, early=None):
    pos, t = divmod(gi, 3)
    for e in range(2):
        d = A_X + (pos * 6 + e * 3 + t) * 4
        p.raw(f'ds_read_b128 {a(d,4)}, v{V_XA+e} offset:{(gi % NXG) * 2048}', 'ds', R('a', d, 4) + [f'R:x{gi}', 'R:xall'],
              [f'v{V_XA+e}', f'D:x{gi}'], prio=HP, early=early)


def dma_kv(p, which, J, slot, free=None, pieces=(0, 1, 2, 3), early=None, step=0, setm0=True):
    S, vo = (S_K, V_KD) if which == 'K' else (S_V, V_VD)
    assert free is None or any(free in o.defs for o in p.ops), (which, J, free)
    u = [free] if free else []
    k = dict(prio=HP, early=None if early is None else early - 2)
    if setm0:
        p.salu(f's_add_u32 m0, s{S_M0K}, {slot*16384}', ['m0'], [f's{S_M0K}'] + u, **k)
    if pieces[0] == 0:
        if KROT:
            p.salu(f's_add_u32 s{S_KVO}, s{S_ROT}, {J*16384}', [f's{S_KVO}'], u + [f's{S_ROT}'], **k)
            p.salu(f's_and_b32 s{S_KVO}, s{S_KVO}, 0x1c000', [f's{S_KVO}'], [f's{S_KVO}'], **k)
        else:
            p.salu(f's_mov_b32 s{S_KVO}, {J*16384}', [f's{S_KVO}'], u, **k)
    for n, j in enumerate(pieces):
        p.raw(f'buffer_load_dwordx4 v{vo}, {s(S,4)}, s{S_KVO} offen offset:{j*1024}{KVF} lds', 'dma',
              [f'D:{which}{J}', 'VMORD:'], [f'v{vo}', 'm0', f's{S_KVO}'] + R('s', S, 4) + u, prio=HP,
              early=None if early is None else int(early + n * step))


def dma_wo(p, pieces, early=None):
    p.salu(f's_add_u32 m0, s{S_M0K}, {WOSLOT*16384}', ['m0'], [f's{S_M0K}'], prio=HP, early=None if early is None else early - 1)
    for j in pieces:
        p.raw(f'buffer_load_dwordx4 v{V_OD+j}, {s(S_WO,4)}, 0 offen offset:{j*1024}{WOF} lds', 'dma',
              ['D:wo', 'VMORD:'], [f'v{V_OD+j}', 'm0'] + R('s', S_WO, 4), prio=HP, early=early)


def barrier(p, uses, defs, **k):
    return p.raw('s_barrier', 'bar', list(defs) + ['BARORD:'], list(uses), **k)


def qacc(ks, b2, t): return V_O + ((ks * 2 + b2) * 3 + t) * 4
def oacc(dt, t): return V_O + (dt * 3 + t) * 4
def qfrag(ks, t): return V_Q + (ks * 3 + t) * 4
def sreg(st, u, t): return V_S + (st & 1) * 24 + (u * 3 + t) * 4
def preg(st, t): return V_P + (st & 1) * 12 + t * 4


KSLOT = [8, 7, 1, 6, 4, 8, 7, 1]
VSLOT = [9, 0, 2, 3, 5, 9, 0, 2]
KBASE = [7, 7, 1, 4, 4, 7, 7, 1]
VBASE = [6, 0, 0, 0, 5, 6, 0, 0]
WOSLOT = 7


def k1_main(p):
    DSWIN = int(E('DSWIN', 12))
    WQWIN = int(E('WQWIN', 27))
    wr = [0]

    def wq_frag(pos, e, ks, b2):
        d = A_WR + (wr[0] % NWR) * 4
        wr[0] += 1
        for m in range(2):
            off = (pos % 3) * 8192 + e * 4096 + m * 1024 + 8 * b2
            p.raw(f'ds_read_b64_tr_b16 {a(d+2*m,2)}, v{V_WA+ks} offset:{off}', 'ds',
                  R('a', d + 2 * m, 2) + [f'R:wq{pos}'], [f'v{V_WA+ks}', f'L:wq{pos}'], win=WQWIN - sched.DS_LAT)
        return d

    def q_mfmas(pos, e, ks, b2):
        d = wq_frag(pos, e, ks, b2)
        for t in range(3):
            acc = qacc(ks, b2, t)
            first = pos == 0 and e == 0
            p.mfma(('v', acc), ('a', d), ('a', A_X + (pos * 6 + e * 3 + t) * 4), None if first else ('v', acc))

    def convert_q(ks):
        for t in range(3):
            for b2 in range(2):
                r0 = qacc(ks, b2, t)
                for i in range(4):
                    p.valu(f'v_mul_f32 v{r0+i}, s{S_SC}, v{r0+i}', [f'v{r0+i}'], [f'v{r0+i}', f's{S_SC}'])
                for h2 in range(2):
                    d = qfrag(ks, t) + 2 * b2 + h2
                    p.valu(f'v_cvt_pk_bf16_f32 v{d}, v{r0+2*h2}, v{r0+2*h2+1}', [f'v{d}'], R('v', r0 + 2 * h2, 2))

    def wo_publish(early):
        for n4 in range(4):
            for m in range(2):
                d = A_WO + n4 * 4 + 2 * m
                p.raw(f'ds_read_b64_tr_b16 {a(d,2)}, v{V_OA+n4} offset:{m*2048}', 'ds',
                      R('a', d, 2) + ['R:wo'], [f'v{V_OA+n4}', 'D:wo'], early=early, prio=HP // 2)

    def wo_store(early, n4):
        d = A_WO + n4 * 4
        p.raw(f'buffer_store_dwordx4 {a(d,4)}, v{V_L16}, {s(S_WD,4)}, 0 offen offset:{n4*1024}{STF}', 'vms',
              ['VMORD:', 'D:wost'], R('a', d, 4) + [f'v{V_L16}'] + R('s', S_WD, 4), early=early, prio=HP)

    ev = []
    XL = int(E('XLEAD', 40))
    XP = float(E('XPACE', 12))
    xr = lambda gi: -10 if gi < 3 else max(min(16 * gi - XL, int(XP * gi + float(E('XOFS', 0)))), int(E('XR0', 28)) + 5 * (gi - 3))
    for gi in range(3, 24):
        ev.append((xr(gi), 0, lambda g, gi=gi: read_x(p, gi, g)))
    for gi in range(NPREX, 24):
        g0 = 1 + 5 * (gi - NPREX)
        if gi >= NXG:
            g0 = max(g0, xr(gi - NXG) + 9)
        ev.append((g0, 1, lambda g, gi=gi: dma_x(p, gi, g)))
    if NPREW < 3:
        ev.append((3, 1, lambda g: dma_wq(p, 2, 0, None, g)))
        ev.append((8, 1, lambda g: dma_wq(p, 2, 1, None, g)))
    for pos in range(3, 8):
        for half in range(2):
            ev.append((48 * (pos - 3) + 28 + 14 * half, 1, lambda g, pos=pos, half=half: dma_wq(p, pos, half, f'F:q{pos-2}', g)))
    G0, G1 = int(E('AG0', 215)), int(E('AG1', 1050))
    tiles = [('V', 0, None), ('K', 1, f'F:q{WOREL}'), ('V', 1, f'F:q{XREL}'), ('K', 2, f'F:q{XREL}'), ('V', 2, f'F:q{XREL}'),
             ('K', 3, 'F:q6'), ('V', 3, 'F:qe'), ('K', 4, 'F:qe'), ('V', 4, 'F:qe'),
             ('K', 5, 'F:a1'), ('V', 5, 'F:a1'), ('K', 6, 'F:a2'), ('V', 6, 'F:a2'), ('K', 7, 'F:a3'), ('V', 7, 'F:a3')]
    stp = (G1 - G0) / (4.0 * len(tiles))
    rest = []
    for n, (w_, J, fr) in enumerate(tiles):
        g0 = G0 + 4 * n * stp
        if g0 + 3 * stp < 360:
            for j0 in (0, 2):
                gq = int(g0 + j0 * stp)
                if fr:
                    gq = max(gq, 48 * (int(fr[3]) - 1) + 24 + j0)
                ev.append((gq, 1, lambda g, w_=w_, J=J, j0=j0, fr=fr: dma_kv(p, w_, J, (KSLOT if w_ == 'K' else VSLOT)[J], fr, (j0, j0 + 1), g)))
        else:
            rest.append((g0, (w_, J, fr)))
    for nm, dflt in (('WO', 44), ('K0', 20)):
        g0 = int(E(nm + 'G', dflt))
        if g0 >= 0:
            for j0 in (0, 2):
                if nm == 'WO':
                    ev.append((g0 + 6 * j0, 1, lambda g, j0=j0: dma_wo(p, (j0, j0 + 1), g)))
                else:
                    ev.append((g0 + 6 * j0, 1, lambda g, j0=j0: dma_kv(p, 'K', 0, KSLOT[0], None, (j0, j0 + 1), g)))
    ev.append((int(E('WORD', 150)), 2, wo_publish))
    for n4 in range(4):
        ev.append((int(E('WOST', 290)) + 4 * n4, 1, lambda g, n4=n4: wo_store(g, n4)))
    ev.sort(key=lambda t: t[:2])

    def flush(upto):
        while ev and ev[0][0] < upto:
            g, _, f = ev.pop(0)
            f(g)

    for pos in range(8):
        uses = [f'D:wq{pos}']
        if pos >= 1:
            uses.append(f'R:wq{pos-1}')
        if pos == WOREL:
            uses.append('R:wo')
        if pos == XREL:
            uses.append('R:xall')
        barrier(p, uses, [f'L:wq{pos}', f'F:q{pos}'], win=WQWIN - sched.DS_LAT + 1)
        if pos == 0:
            for i_, g_ in enumerate(STG): stamp(p, 1 + i_, g_)
            for gi in range(3):
                read_x(p, gi)
        flush(48 * pos + 24)
        if pos < 7:
            for e in range(2):
                for ks in range(4):
                    for b2 in range(2):
                        q_mfmas(pos, e, ks, b2)
        else:
            for ks in range(4):
                for e in range(2):
                    for b2 in range(2):
                        q_mfmas(pos, e, ks, b2)
                convert_q(ks)
    p.valu(f'v_mov_b32 v{V_T+4}, 0x3f803f80', [f'v{V_T+4}'])
    for i in range(4):
        p.valu(f'v_accvgpr_write_b32 a{A_ONE+i}, v{V_T+4}', [f'a{A_ONE+i}'], [f'v{V_T+4}'])
    if not FT:
        for i in range(12):
            p.valu(f'v_mov_b32 v{V_NM+i}, 0', [f'v{V_NM+i}'])

    kr = [0]
    vr = [0]
    kbase = [KBASE[0]]
    vbase = [VBASE[0]]

    def k_frag(st, u, ks):
        J = st >> 1
        sl = KSLOT[J]
        if KBASE[J] != kbase[0]:
            dlt = (KBASE[J] - kbase[0]) * 16384
            kbase[0] = KBASE[J]
            for k2 in range(4):
                p.valu(f'v_add_u32 v{V_KA+k2}, {dlt}, v{V_KA+k2}', [f'v{V_KA+k2}'], [f'v{V_KA+k2}'])
        d = A_KR + (kr[0] % NKR) * 4
        kr[0] += 1
        off = (sl - kbase[0]) * 16384 + (2 * (st & 1) + u) * 1024
        p.raw(f'ds_read_b128 {a(d,4)}, v{V_KA+ks} offset:{off}', 'ds',
              R('a', d, 4) + [f'R:K{J}'], [f'v{V_KA+ks}', f'L:K{J}'], win=DSWIN)
        return d

    def v_frag(st, dt):
        J = st >> 1
        sl = VSLOT[J]
        if VBASE[J] != vbase[0]:
            dlt = (VBASE[J] - vbase[0]) * 16384
            vbase[0] = VBASE[J]
            for k2 in range(8):
                p.valu(f'v_add_u32 v{V_VA+k2}, {dlt}, v{V_VA+k2}', [f'v{V_VA+k2}'], [f'v{V_VA+k2}'])
        d = A_VR + (vr[0] % NVR) * 4
        vr[0] += 1
        for m in range(2):
            off = (sl - vbase[0]) * 16384 + (st & 1) * 2048 + m * 1024
            p.raw(f'ds_read_b64_tr_b16 {a(d+2*m,2)}, v{V_VA+dt} offset:{off}', 'ds',
                  R('a', d + 2 * m, 2) + [f'R:V{J}'], [f'v{V_VA+dt}', f'L:V{J}'], win=DSWIN)
        return d

    def qk(st):
        order = [(u, ks) for ks in range(4) for u in range(2)] if st == 0 else [(u, ks) for u in range(2) for ks in range(4)]
        for u, ks in order:
            d = k_frag(st, u, ks)
            for t in range(3):
                r0 = sreg(st, u, t)
                if ks == 0:
                    c = None if (FT and st <= 1) else ('v', V_NM + 4 * t)
                else:
                    c = ('v', r0)
                p.mfma(('v', r0), ('a', d), ('v', qfrag(ks, t)), c)

    def first_max():
        T = V_T
        for t in range(3):
            rs = [sreg(0, u, t) + i for u in range(2) for i in range(4)]
            m, x = T + 2 * t, T + 2 * t + 1
            p.valu(f'v_max3_f32 v{m}, v{rs[0]}, v{rs[1]}, v{rs[2]}', [f'v{m}'], [f'v{r}' for r in rs[:3]])
            p.valu(f'v_max3_f32 v{m}, v{m}, v{rs[3]}, v{rs[4]}', [f'v{m}'], [f'v{m}'] + [f'v{r}' for r in rs[3:5]])
            p.valu(f'v_max3_f32 v{m}, v{m}, v{rs[5]}, v{rs[6]}', [f'v{m}'], [f'v{m}'] + [f'v{r}' for r in rs[5:7]])
            p.valu(f'v_max_f32 v{m}, v{m}, v{rs[7]}', [f'v{m}'], [f'v{m}', f'v{rs[7]}'])
            for sw in ('v_permlane32_swap_b32', 'v_permlane16_swap_b32'):
                p.valu(f'v_mov_b32 v{x}, v{m}', [f'v{x}'], [f'v{m}'])
                p.valu(f'{sw} v{x}, v{m}', [f'v{x}', f'v{m}'], [f'v{x}', f'v{m}'], kind='perm')
                p.valu(f'v_max_f32 v{m}, v{m}, v{x}', [f'v{m}'], [f'v{m}', f'v{x}'])
            for i in range(4):
                p.valu(f'v_sub_f32 v{V_NM+4*t+i}, 0, v{m}', [f'v{V_NM+4*t+i}'], [f'v{m}'])

    def softmax(st):
        for t in range(3):
            for u in range(2):
                r0 = sreg(st, u, t)
                for i in range(4):
                    if FT and st <= 1:
                        p.valu(f'v_add_f32 v{r0+i}, v{r0+i}, v{V_NM+4*t}', [f'v{r0+i}'], [f'v{r0+i}', f'v{V_NM+4*t}'])
                    p.valu(f'v_exp_f32 v{r0+i}, v{r0+i}', [f'v{r0+i}'], [f'v{r0+i}'], kind='trans')
                for h2 in range(2):
                    d = preg(st, t) + 2 * u + h2
                    p.valu(f'v_cvt_pk_bf16_f32 v{d}, v{r0+2*h2}, v{r0+2*h2+1}', [f'v{d}'], R('v', r0 + 2 * h2, 2))

    def pv(st):
        def lsum():
            for t in range(3):
                p.mfma(('a', A_L + 4 * t), ('a', A_ONE), ('v', preg(st, t)), None if st == 0 else ('a', A_L + 4 * t))
        if st == 15:
            lsum()
            T = V_T
            for t in range(3):
                p.valu(f'v_accvgpr_read_b32 v{T+t}, a{A_L+4*t}', [f'v{T+t}'], [f'a{A_L+4*t}'], prio=HP)
                p.valu(f'v_rcp_f32 v{T+3+t}, v{T+t}', [f'v{T+3+t}'], [f'v{T+t}'], kind='trans', prio=HP)
            LO, HI = (127 - 30) << 23, (127 + 30) << 23
            X = V_NM
            for t in range(3):
                p.valu(f'v_subrev_u32 v{X+t}, {LO:#x}, v{T+t}', [f'v{X+t}'], [f'v{T+t}'], prio=HP)
            p.valu(f'v_max3_u32 v{X}, v{X}, v{X+1}, v{X+2}', [f'v{X}'], R('v', X, 3), prio=HP)
            p.valu(f'v_cmp_lt_u32 vcc, {HI-LO:#x}, v{X}', ['vcc'], [f'v{X}'], prio=HP)
            p.salu('s_or_b32 s7, vcc_lo, vcc_hi', ['s7'], ['vcc'], prio=HP)
            p.valu(f'v_mov_b32 v{X+1}, s7', [f'v{X+1}'], ['s7'], prio=HP)
            p.salu(f's_lshl_b32 s58, s{S_W}, 2', ['s58'], [f's{S_W}'], prio=HP)
            p.valu(f'v_mov_b32 v{X+2}, s58', [f'v{X+2}'], ['s58'], prio=HP)
            p.raw(f'ds_write_b32 v{X+2}, v{X+1} offset:{BADA}', 'dsw', ['W:bad'], [f'v{X+1}', f'v{X+2}', 'F:a7'], prio=HP)
            barrier(p, ['W:bad', 'R:K7'], ['F:ae'], prio=HP)
            p.valu(f'v_mov_b32 v{X+3}, 0', [f'v{X+3}'], prio=HP)
            p.raw(f'ds_read_b128 {v(X+4,4)}, v{X+3} offset:{BADA}', 'ds', R('v', X + 4, 4), [f'v{X+3}', 'F:ae'], prio=HP)
            p.valu(f'v_or3_b32 v{X+4}, v{X+4}, v{X+5}, v{X+6}', [f'v{X+4}'], R('v', X + 4, 3), prio=HP)
            p.valu(f'v_or_b32 v{X+4}, v{X+4}, v{X+7}', [f'v{X+4}'], [f'v{X+4}', f'v{X+7}'], prio=HP)
            p.valu(f'v_readfirstlane_b32 s7, v{X+4}', ['s7'], [f'v{X+4}'], prio=HP)
            p.salu('s_cmp_lg_u32 s7, 0\n  s_cbranch_scc1 L_redo', ['F:ok'], ['s7', 'VMORD:', 'SORD:'], prio=HP)
        for dt in range(8):
            d = v_frag(st, dt)
            for t in range(3):
                acc = oacc(dt, t)
                p.mfma(('v', acc), ('a', d), ('v', preg(st, t)), None if st == 0 else ('v', acc))
            if st == 15 and dt & 1:
                ks = dt >> 1
                for t in range(3):
                    dst = V_S + (ks * 3 + t) * 4
                    for b2 in range(2):
                        r0 = oacc(2 * ks + b2, t)
                        for i in range(4):
                            p.valu(f'v_mul_f32 v{r0+i}, v{V_T+3+t}, v{r0+i}', [f'v{r0+i}'], [f'v{r0+i}', f'v{V_T+3+t}'])
                        for h2 in range(2):
                            p.valu(f'v_cvt_pk_bf16_f32 v{dst+2*b2+h2}, v{r0+2*h2}, v{r0+2*h2+1}', [f'v{dst+2*b2+h2}'],
                                   R('v', r0 + 2 * h2, 2))
                    k = ks * 3 + t
                    so = ['0', f's{S_4K}', f's{S_8K}'][k >> 2]
                    p.raw(f'buffer_store_dwordx4 {v(dst,4)}, v{V_L16}, {s(S_OD,4)}, {so} offen offset:{(k&3)*1024}{STF}', 'vms',
                          ['VMORD:', 'D:ost'], R('v', dst, 4) + [f'v{V_L16}', f's{S_4K}', f's{S_8K}', 'F:ok'] + R('s', S_OD, 4), prio=HP)
        if st != 15:
            lsum()

    flush(10 ** 6)
    have = {None} | {f'F:q{i}' for i in range(8)}

    T = V_T

    def arrive(g):
        p.salu('s_and_b32 s7, s2, 1', ['s7'], ['s2', 'F:a0'])
        p.salu('s_lshl_b32 s7, s7, 7', ['s7'], ['s7'])
        p.valu(f'v_lshl_add_u32 v{T}, v0, 12, s7', [f'v{T}'], ['v0', 's7'])
        p.valu(f'v_mov_b32 v{T+1}, 1', [f'v{T+1}'])
        p.raw(f'buffer_atomic_add v{T+1}, v{T}, {s(S_DB,4)}, 0 offen sc1', 'vms', ['VMORD:'],
              [f'v{T}', f'v{T+1}', 'F:a0'] + R('s', S_DB, 4), prio=HP)
        srd(p, S_WS, 78, f's{S_WSO}', 131072)
        srd(p, S_OS, 78, f's{S_OSO}', 98304)
        srd(p, S_OUT, 74, f's{S_OUTO}', ('1572864', f's{S_OUTO}'))

    def chk_load(g):
        p.valu(f'v_lshlrev_b32 v{T}, 3, v{V_L16}', [f'v{T}'], [f'v{V_L16}'])
        p.raw(f'buffer_load_dword v{T+1}, v{T}, {s(S_DB,4)}, 0 offen sc1', 'vml', [f'v{T+1}', 'VMORD:'], [f'v{T}'] + R('s', S_DB, 4),
              early=g, prio=HP)

    def chk_test(g):
        p.valu(f'v_cmp_le_u32 vcc, 0x80, v{T+1}', ['vcc'], [f'v{T+1}'], early=g, prio=HP)
        p.salu('s_cmp_eq_u32 vcc_lo, 3\n  s_cbranch_scc0 L_chk_slow\nL_chk_ret:', ['F:chk'], ['vcc', f'v{T}', f'v{T+1}'], prio=HP)

    def wo_reg(g, f):
        kk, n = divmod(f, 4)
        if n == 0:
            p.salu(f's_mov_b32 s{S_P0}, {kk*4096}', [f's{S_P0}'], ['F:chk'], early=g - 1, prio=HP)
        d = 64 + 4 * f
        p.raw(f'buffer_load_dwordx4 {a(d,4)}, v{V_WV+n}, {s(S_WS,4)}, s{S_P0} offen sc1', 'vml', R('a', d, 4) + ['VMORD:'],
              [f'v{V_WV+n}', f's{S_P0}', 'F:chk'] + R('s', S_WS, 4), early=g, prio=HP)

    def wo_lds(g, i, j, fr):
        if j == 0:
            p.salu(f's_mov_b32 s{S_P1}, {(NPF+i)*4096}', [f's{S_P1}'], ['F:chk', fr], early=g - 2, prio=HP)
        p.salu(f's_add_u32 m0, s{S_M0K}, {WLSLOT[i]*16384}', ['m0'], [f's{S_M0K}', fr], early=g - 1, prio=HP)
        p.raw(f'buffer_load_dwordx4 v{V_L16}, {s(S_WS,4)}, s{S_P1} offen offset:{j*1024} sc1 lds', 'dma', [f'D:wl{i}', 'VMORD:'],
              [f'v{V_L16}', 'm0', f's{S_P1}', 'F:chk', fr] + R('s', S_WS, 4), early=g, prio=HP)

    av = []
    for g0, (w_, J, fr) in rest:
        for j in range(4):
            av.append((int(g0 + j * stp), fr, lambda g, w_=w_, J=J, j=j, fr=fr:
                       dma_kv(p, w_, J, (KSLOT if w_ == 'K' else VSLOT)[J], fr, (j,), g, 0, j == 0 or NLD > 0)))
    CK = int(E('CK', 940))
    av.append((421, 'F:a0', arrive))
    if E('TOUCH'):
        def touch(g):
            for n_, S_ in enumerate((S_OD, S_OS, S_OUT, S_WS)):
                p.raw(f'buffer_load_dword v{T+2+n_}, v{V_FW}, {s(S_,4)}, 0 offen sc1'.replace(f'v{V_FW},', f'v{T},'), 'vml', [f'v{T+2+n_}', 'VMORD:'], [f'v{T}'] + R('s', S_, 4), early=g + 3 * n_, prio=HP)
        av.append((CK + 1, None, touch))
    av.append((CK, None, chk_load))
    av.append((CK + int(E('CKD', 70)), None, chk_test))
    P0, P1 = max(CK + int(E('CKD', 70)) + 6, int(E('PF0', 1056))), int(E('PF1', 1175))
    for f in range(4 * NPF):
        av.append((int(P0 + (P1 - P0) * f / (4.0 * NPF)), None, lambda g, f=f: wo_reg(g, f)))
    L0, L1 = int(E('PL0', 900)), int(E('PL1', 1160))
    for i in range(NLD):
        for j in range(4):
            av.append((int(L0 + (L1 - L0) * (4 * i + j) / (4.0 * NLD)), WLFREE[i], lambda g, i=i, j=j: wo_lds(g, i, j, WLFREE[i])))
    av.sort(key=lambda t: t[0])

    def flush_rest(upto):
        keep = []
        blocked = set()
        for it in list(av):
            if it[0] < upto and it[1] in have:
                it[2](it[0])
                av.remove(it)

    flush_rest(372)
    barrier(p, ['D:K0', 'R:wq7'], ['L:K0', 'F:qe'], win=2)
    have.add('F:qe')
    flush_rest(420)
    qk(0)
    if FT:
        first_max()
    softmax(0)
    for st in range(16):
        J = st >> 1
        if st & 1 == 0:
            uses = [f'D:V{J}'] + ([f'D:K{J+1}'] if J < 7 else [])
            uses += [f'R:V{J-1}', f'R:K{J-1}'] if J >= 1 else ['D:wost']
            barrier(p, uses, [f'L:V{J}', f'L:K{J+1}', f'F:a{J}'], win=2)
            have.add(f'F:a{J}')
            flush_rest(420 + 102 * (J + 1) if J < 7 else 10 ** 6)
        if st < 15:
            qk(st + 1)
            softmax(st + 1)
        pv(st)
    assert not av


WLSLOT = [6, 3, 4, 5, 8, 9, 7]
WLFREE = ['F:a4', 'F:a4', 'F:a5', 'F:a5', 'F:a6', 'F:a6', 'F:a7']


def phase4():
    T = V_T
    ACC = 16
    nres = 4 * NPF
    pool = [('a', i) for i in range(64 + 4 * nres, 256, 4)] + [('a', i) for i in range(0, 64, 4)] + \
           [('v', i) for i in range(136, 244, 4)]
    NLR = 8 if NLD else 0
    lring = [pool.pop() for _ in range(NLR)]
    oring = [('v', i) for i in range(64, 136, 4)]
    first = 4 * (NPF + NLD)
    slot = {}
    for f in range(nres):
        slot[f] = ('a', 64 + 4 * f)
    for n_, f in enumerate(range(first, 128)):
        slot[f] = pool[n_] if n_ < len(pool) else slot[n_ - len(pool)]
    so_state = {}

    def wload(p, f, **k):
        kk, n = divmod(f, 4)
        if so_state.get('w') != kk:
            so_state['w'] = kk
            p.salu(f's_mov_b32 s{S_P0}, {kk*4096}', [f's{S_P0}'], prio=HP)
        r = slot[f]
        p.raw(f'buffer_load_dwordx4 {rng(r[0], r[1], 4)}, v{V_WV+n}, {s(S_WS,4)}, s{S_P0} offen sc1', 'vml',
              R(r[0], r[1], 4) + ['VMORD:'], [f'v{V_WV+n}', f's{S_P0}'] + R('s', S_WS, 4), prio=HP, **k)

    def oload(p, kk, t, **k):
        if so_state.get('o') != kk:
            so_state['o'] = kk
            p.salu(f's_mov_b32 s{S_P1}, {kk*3072}', [f's{S_P1}'], prio=HP)
        r = oring[(kk * 3 + t) % len(oring)]
        p.raw(f'buffer_load_dwordx4 {rng(r[0], r[1], 4)}, v{V_L16}, {s(S_OS,4)}, s{S_P1} offen offset:{t*1024} sc1', 'vml',
              R(r[0], r[1], 4) + ['VMORD:'], [f'v{V_L16}', f's{S_P1}'] + R('s', S_OS, 4), prio=HP, **k)

    p = Prog()
    V = p.valu
    NA, NB = int(E('NA', 4)), int(E('NB', 24))
    nxt = first
    barrier(p, [], ['F:p4'])
    for _ in range(NA):
        wload(p, nxt); nxt += 1
    for n in range(4):
        p.salu(f's_add_u32 s7, s{S_W}, {n}', ['s7'], [f's{S_W}'])
        p.salu('s_and_b32 s7, s7, 3', ['s7'], ['s7'])
        p.salu('s_mul_i32 s7, s7, 9216', ['s7'], ['s7'])
        if n:
            p.salu(f's_add_u32 s7, s7, {(n-1)*3072}', ['s7'], ['s7'])
        V(f'v_add_u32 v{8+n}, s7, v{V_L16}', [f'v{8+n}'], ['s7', f'v{V_L16}'])
        p.salu(f's_add_u32 s7, s{S_M0K}, {3*16384}', ['s7'], [f's{S_M0K}'])
        V(f'v_add_u32 v{4+n}, s7, v{V_WV+n}', [f'v{4+n}'], ['s7', f'v{V_WV+n}'])
    V('v_and_b32 v12, 15, v0', ['v12'], ['v0'])
    V('v_lshlrev_b32 v12, 10, v12', ['v12'], ['v12'])
    V('v_bfe_u32 v13, v0, 4, 2', ['v13'], ['v0'])
    V('v_lshl_add_u32 v12, v13, 3, v12', ['v12'], ['v12', 'v13'])
    V(f'v_mov_b32 v{T}, 1', [f'v{T}'])
    p.salu('s_mov_b32 s42, 16384', ['s42'])
    p.salu('s_mov_b32 s43, 32768', ['s43'])
    p.raw(f'buffer_store_dword v{T}, v{V_FW}, {s(S_FL,4)}, 0 offen sc1', 'vms', ['VMORD:'],
          [f'v{T}', f'v{V_FW}', 'D:ost'] + R('s', S_FL, 4))
    stamp(p, NSTAMP - 4)
    for _ in range(min(NB, len(pool) - NA)):
        wload(p, nxt); nxt += 1
    p.salu('s_mov_b32 s58, 0', ['s58'])
    p.raw('L_poll:', 'label')
    p.raw(f'buffer_load_dword v{T+1}, v{V_FP}, {s(S_FL,4)}, 0 offen sc1', 'vml', [f'v{T+1}', 'VMORD:'], [f'v{V_FP}'] + R('s', S_FL, 4))
    V(f'v_cmp_eq_u32 vcc, 1, v{T+1}', ['vcc'], [f'v{T+1}'])
    p.salu('s_add_u32 s58, s58, 1', ['s58'], ['s58'])
    p.salu('s_cmp_eq_u32 vcc_lo, 0xff\n  s_cbranch_scc1 L_go', [], ['vcc'])
    p.salu(f's_cmp_lt_u32 s58, {SPIN}\n  s_cbranch_scc1 L_poll\nL_go:', [], ['s58'])
    stamp(p, NSTAMP - 3)
    NPRE = int(E('NPREO', 4))
    for kk in range(NPRE):
        for t in range(3):
            oload(p, kk, t)
    win = p.ops
    p = Prog()
    lr = [0]
    lbase = [3]
    wq_ = list(range(nxt, 128))
    for kk in range(32):
        for n in range(4):
            f = kk * 4 + n
            if NPF <= kk < NPF + NLD:
                sl = WLSLOT[kk - NPF]
                if not (0 <= sl - lbase[0] <= 3):
                    for k2 in range(4):
                        p.valu(f'v_add_u32 v{4+k2}, {(7 - lbase[0])*16384}, v{4+k2}', [f'v{4+k2}'], [f'v{4+k2}'])
                    lbase[0] = 7
                A = lring[lr[0] % NLR]
                lr[0] += 1
                p.raw(f'ds_read_b128 {rng(A[0], A[1], 4)}, v{4+n} offset:{(sl - lbase[0])*16384}', 'ds', R(A[0], A[1], 4),
                      [f'v{4+n}', f'D:wl{kk-NPF}'], win=14)
            else:
                A = slot[f]
            for t in range(3):
                acc = ACC + (n * 3 + t) * 4
                p.mfma(('v', acc), A, oring[(kk * 3 + t) % len(oring)], None if kk == 0 else ('v', acc))
            if n == 0 and kk + NPRE < 32:
                for t in range(3):
                    oload(p, kk + NPRE, t)
            if n == 3:
                cnt = 0
                while wq_ and cnt < int(E('WPER', 2)) or (wq_ and wq_[0] // 4 <= kk + NPRE + 1):
                    f2 = wq_[0]
                    n2 = f2 - first - len(pool)
                    if n2 >= 0 and n2 // 4 > kk:
                        break
                    wload(p, wq_.pop(0))
                    cnt += 1
    assert not wq_
    body = schedule(p.ops, True, 'p4')
    p = Prog()
    V = p.valu
    stamp(p, NSTAMP - 2)
    for n in range(1, 4):
        for t in range(3):
            acc = ACC + (n * 3 + t) * 4
            p.raw(f'ds_write_b128 v{8+n}, {v(acc,4)} offset:{t*1024}', 'dsw', ['W:red'], [f'v{8+n}'] + R('v', acc, 4))
    barrier(p, ['W:red'], ['L:red'])
    for sl in range(3):
        for t in range(3):
            d = 64 + (sl * 3 + t) * 4
            p.raw(f'ds_read_b128 {v(d,4)}, v8 offset:{(sl*3+t)*1024}', 'ds', R('v', d, 4), ['v8', 'L:red'])
    for t in range(3):
        acc = ACC + t * 4
        for sl in range(3):
            d = 64 + (sl * 3 + t) * 4
            for i in range(4):
                V(f'v_add_f32 v{acc+i}, v{acc+i}, v{d+i}', [f'v{acc+i}'], [f'v{acc+i}', f'v{d+i}'])
        for h2 in range(2):
            V(f'v_cvt_pk_bf16_f32 v{112+2*t+h2}, v{acc+2*h2}, v{acc+2*h2+1}', [f'v{112+2*t+h2}'], R('v', acc + 2 * h2, 2))
        so = ['0', 's42', 's43'][t]
        p.raw(f'buffer_store_dwordx2 {v(112+2*t,2)}, v12, {s(S_OUT,4)}, {so} offen{E("OUTF", "")}', 'vms', [],
              R('v', 112 + 2 * t, 2) + ['v12', 's42', 's43'] + R('s', S_OUT, 4))
    if STAMP:
        p.raw('s_waitcnt vmcnt(0)', 'wait')
    stamp(p, NSTAMP - 1)
    return win, body, p.ops


def redo_path(L):
    T = V_T
    ko = (KSLOT[7] - KBASE[7]) * 16384
    vo = (VSLOT[7] - VBASE[7]) * 16384

    def drain(p):
        p.raw('s_waitcnt vmcnt(0) lgkmcnt(0)', 'wait')
        p.raw('s_nop 7', 'nop')
        p.raw('s_nop 7', 'nop')

    def stage(p, withv):
        p.raw('s_barrier', 'bar')
        for w_, sl in (('K', KSLOT[7]), ('V', VSLOT[7]))[:1 + withv]:
            S, vo_ = (S_K, V_KD) if w_ == 'K' else (S_V, V_VD)
            p.salu(f's_add_u32 m0, s{S_M0K}, {sl*16384}', ['m0'])
            for j in range(4):
                p.raw(f'buffer_load_dwordx4 v{vo_}, {s(S,4)}, s{S_KVO} offen offset:{j*1024} lds', 'dma', [], ['m0'])
        p.raw('s_waitcnt vmcnt(0)', 'wait')
        p.raw('s_barrier', 'bar')

    def scores(p, uu, dst, c):
        for ks in range(4):
            p.raw(f'ds_read_b128 {a(4*ks,4)}, v{V_KA+ks} offset:{ko + uu*1024}', 'ds', R('a', 4 * ks, 4))
        for ks in range(4):
            for t in range(3):
                p.mfma(('v', dst + 4 * t), ('a', 4 * ks), ('v', qfrag(ks, t)),
                       (c(t) if ks == 0 else ('v', dst + 4 * t)))

    def loop_end(p, lab):
        drain(p)
        p.salu(f's_add_u32 s{S_KVO}, s{S_KVO}, 16384', [f's{S_KVO}'])
        p.salu(f's_cmp_lt_u32 s{S_KVO}, 131072\n  s_cbranch_scc1 {lab}')

    L.append('L_redo:')
    p = Prog()
    drain(p)
    for t in range(3):
        p.valu(f'v_mov_b32 v{T+t}, 0xff800000', [f'v{T+t}'])
    p.salu(f's_mov_b32 s{S_KVO}, 0', [f's{S_KVO}'])
    p.raw('L_redo1:', 'label')
    stage(p, 0)
    for uu in range(4):
        scores(p, uu, V_S, lambda t: None)
        for t in range(3):
            r0 = V_S + 4 * t
            p.valu(f'v_max3_f32 v{T+t}, v{T+t}, v{r0}, v{r0+1}', [f'v{T+t}'], [f'v{T+t}', f'v{r0}', f'v{r0+1}'])
            p.valu(f'v_max3_f32 v{T+t}, v{T+t}, v{r0+2}, v{r0+3}', [f'v{T+t}'], [f'v{T+t}', f'v{r0+2}', f'v{r0+3}'])
    loop_end(p, 'L_redo1')
    for t in range(3):
        m, x = T + t, T + 3
        for sw in ('v_permlane32_swap_b32', 'v_permlane16_swap_b32'):
            p.valu(f'v_mov_b32 v{x}, v{m}', [f'v{x}'], [f'v{m}'])
            p.valu(f'{sw} v{x}, v{m}', [f'v{x}', f'v{m}'], [f'v{x}', f'v{m}'], kind='perm')
            p.valu(f'v_max_f32 v{m}, v{m}, v{x}', [f'v{m}'], [f'v{m}', f'v{x}'])
        for i in range(4):
            p.valu(f'v_sub_f32 v{V_NM+4*t+i}, 0, v{m}', [f'v{V_NM+4*t+i}'], [f'v{m}'])
    for r in range(96):
        p.valu(f'v_mov_b32 v{V_O+r}, 0', [f'v{V_O+r}'])
    for r in range(12):
        p.valu(f'v_accvgpr_write_b32 a{A_L+r}, 0', [f'a{A_L+r}'])
    p.salu(f's_mov_b32 s{S_KVO}, 0', [f's{S_KVO}'])
    drain(p)
    p.raw('L_redo2:', 'label')
    stage(p, 1)
    for e in range(2):
        for u in range(2):
            scores(p, 2 * e + u, V_S + 12 * u, lambda t: ('v', V_NM + 4 * t))
        for t in range(3):
            for u in range(2):
                r0 = V_S + 12 * u + 4 * t
                for i in range(4):
                    p.valu(f'v_exp_f32 v{r0+i}, v{r0+i}', [f'v{r0+i}'], [f'v{r0+i}'], kind='trans')
                for h2 in range(2):
                    d = V_P + 4 * t + 2 * u + h2
                    p.valu(f'v_cvt_pk_bf16_f32 v{d}, v{r0+2*h2}, v{r0+2*h2+1}', [f'v{d}'], R('v', r0 + 2 * h2, 2))
        for t in range(3):
            p.mfma(('a', A_L + 4 * t), ('a', A_ONE), ('v', V_P + 4 * t), ('a', A_L + 4 * t))
        for d0 in (0, 4):
            for dt in range(d0, d0 + 4):
                for m in range(2):
                    d = A_VR + 4 * (dt - d0) + 2 * m
                    p.raw(f'ds_read_b64_tr_b16 {a(d,2)}, v{V_VA+dt} offset:{vo + e*2048 + m*1024}', 'ds', R('a', d, 2))
            for dt in range(d0, d0 + 4):
                for t in range(3):
                    p.mfma(('v', oacc(dt, t)), ('a', A_VR + 4 * (dt - d0)), ('v', V_P + 4 * t), ('v', oacc(dt, t)))
    loop_end(p, 'L_redo2')
    for t in range(3):
        p.valu(f'v_accvgpr_read_b32 v{T+t}, a{A_L+4*t}', [f'v{T+t}'], [f'a{A_L+4*t}'])
        p.valu(f'v_rcp_f32 v{T+3+t}, v{T+t}', [f'v{T+3+t}'], [f'v{T+t}'], kind='trans')
    for ks in range(4):
        for t in range(3):
            dst = V_S + (ks * 3 + t) * 4
            for b2 in range(2):
                r0 = oacc(2 * ks + b2, t)
                for i in range(4):
                    p.valu(f'v_mul_f32 v{r0+i}, v{T+3+t}, v{r0+i}', [f'v{r0+i}'], [f'v{r0+i}', f'v{T+3+t}'])
                for h2 in range(2):
                    p.valu(f'v_cvt_pk_bf16_f32 v{dst+2*b2+h2}, v{r0+2*h2}, v{r0+2*h2+1}', [f'v{dst+2*b2+h2}'],
                           R('v', r0 + 2 * h2, 2))
            k = ks * 3 + t
            so = ['0', f's{S_4K}', f's{S_8K}'][k >> 2]
            p.raw(f'buffer_store_dwordx4 {v(dst,4)}, v{V_L16}, {s(S_OD,4)}, {so} offen offset:{(k&3)*1024}{STF}', 'vms',
                  [], R('v', dst, 4))
    drain(p)
    p.raw('s_branch L_stored', 'salu')
    emit(L, finish(p.ops, 'redo'))
    T = V_T
    L += ['L_chk_slow:', '  s_mov_b32 s58, 0', 'L_chk_loop:', '  s_sleep 2',
          f'  buffer_load_dword v{T+1}, v{T}, {s(S_DB,4)}, 0 offen sc1', '  s_waitcnt vmcnt(0)',
          f'  v_cmp_le_u32 vcc, 0x80, v{T+1}', '  s_add_u32 s58, s58, 1', '  s_nop 3', '  s_cmp_eq_u32 vcc_lo, 3',
          '  s_cbranch_scc1 L_chk_ret', f'  s_cmp_lt_u32 s58, {SPIN}', '  s_cbranch_scc1 L_chk_loop', '  s_branch L_chk_ret']


def finish(ops, name, vmq=None):
    ops, vq, dq = insert_waits(ops, vmq)
    ops, nn = pad_hazards(ops)
    print(f'; {name}: {len(ops)} instrs, est {estimate(ops)} clks, nops {nn}, waits {sum(o.kind == "wait" for o in ops)}',
          file=sys.stderr)
    return ops


def emit(L, ops):
    for o in ops:
        L.append('  ' + o.text)


def stamps_out(L, n, end, wsreg=78, slot0=0):
    if STAMP == 4:
        i = int(E('STI', 1))
        L += ['  s_waitcnt lgkmcnt(0)', f'  s_cmp_lg_u32 s2, {int(E("STWG", 100))}', f'  s_cbranch_scc1 {end}', f'  s_sub_u32 s7, s{80+2*i}, s80', '  s_lshl_b32 s7, s7, 2',
              'L_dly:', '  s_memrealtime s[8:9]', '  s_waitcnt lgkmcnt(0)', f'  s_sub_u32 s10, s8, s{80+2*(n-1)}', '  s_cmp_lt_u32 s10, s7',
              '  s_cbranch_scc1 L_dly']
        return
    if STAMP == 3:
        L += ['  s_waitcnt lgkmcnt(0)', '  v_cmp_eq_u32 vcc, 0, v0', '  s_nop 4', '  s_and_saveexec_b64 s[12:13], vcc', f'  s_cbranch_execz {end}',
              '  v_mov_b32 v2, 0', '  s_not_b32 s7, s80', '  v_mov_b32 v3, s7', f'  buffer_atomic_umax v3, v2, {s(S_DB,4)}, 0 offen offset:4 sc1',
              '  v_mov_b32 v4, s80', f'  buffer_atomic_umax v4, v2, {s(S_DB,4)}, 0 offen offset:8 sc1',
              f'  v_mov_b32 v5, s{80+2*(n-1)}', f'  buffer_atomic_umax v5, v2, {s(S_DB,4)}, 0 offen offset:12 sc1']
        for q in range(1, n):
            L += [f'  s_sub_u32 s7, s{80+2*q}, s80', f'  v_mov_b32 v{6+q}, s7', f'  buffer_atomic_add v{6+q}, v2, {s(S_DB,4)}, 0 offen offset:{12+4*q} sc1']
        L.append('  s_waitcnt vmcnt(0)')
        return
    L += ['  s_waitcnt lgkmcnt(0)',
          f'  s_mov_b32 s8, s{wsreg}', f'  s_mov_b32 s9, s{wsreg+1}', '  s_mov_b32 s10, 0x10000', '  s_mov_b32 s11, 0x20000']
    for r in range(2 * n):
        L.append(f'  v_mov_b32 v{4+r}, s{80+r}')
    L += ['  s_lshl_b32 s7, s2, 7', '  v_mov_b32 v2, s7', f'  v_cmp_eq_u32 vcc, {int(E("STW", 0))*64}, v0', '  s_nop 4',
          '  s_and_saveexec_b64 s[12:13], vcc', f'  s_cbranch_execz {end}']
    for q in range(n):
        L.append(f'  buffer_store_dwordx2 v[{4+2*q}:{5+2*q}], v2, s[8:11], 0 offen offset:{8*(q+slot0)}')
    L.append('  s_waitcnt vmcnt(0)')


def gen_k1(L, name):
    L += [f'.globl {name}', '.p2align 8', f'.type {name},@function', f'{name}:']
    if STAMP:
        L.append('  s_memrealtime s[80:81]' if STAMP != 2 else '  s_memtime s[80:81]')
    L += ['  s_cmp_ge_u32 s2, 256', '  s_cbranch_scc1 L_k1_end']
    if E('SCR'):
        for i, (bit, mask) in enumerate([(0, 42), (1, 21), (2, 50), (3, 7), (4, 41), (5, 14), (0, 28), (3, 33), (6, 5), (7, 19)]):
            L += [f'  s_bitcmp1_b32 s2, {bit}', f'  s_cbranch_scc0 L_scr{i}', f'  s_xor_b32 s2, s2, {mask}', f'L_scr{i}:']
    p = Prog()
    k1_prologue(p)
    dma_wq(p, 0, 0); dma_wq(p, 0, 1)
    for gi in range(3):
        dma_x(p, gi)
    k1_prologue2(p)
    dma_wq(p, 1, 0); dma_wq(p, 1, 1)
    for gi in range(3, NPREX):
        dma_x(p, gi)
    k1_prologue3(p, KBASE[0], VBASE[0])
    if WQPF:
        T = V_T
        p.valu(f'v_bfe_u32 v{T+4}, v0, 1, 4', [f'v{T+4}'], ['v0'])
        p.valu(f'v_and_b32 v{T+5}, 1, v0', [f'v{T+5}'], ['v0'])
        p.valu(f'v_lshlrev_b32 v{T+5}, 7, v{T+5}', [f'v{T+5}'], [f'v{T+5}'])
        p.valu(f'v_lshl_add_u32 v{T+4}, v{T+4}, 13, v{T+5}', [f'v{T+4}'], [f'v{T+4}', f'v{T+5}'])
        p.salu(f's_lshl_b32 s7, s{S_B}, 2', ['s7'], [f's{S_B}'])
        p.salu(f's_add_u32 s7, s7, s{S_W}', ['s7'], ['s7', f's{S_W}'])
        p.salu('s_lshl_b32 s7, s7, 17', ['s7'], ['s7'])
        p.raw(f'buffer_load_dword v{V_S}, v{T+4}, {s(S_WQ,4)}, s7 offen', 'vml', [f'v{V_S}', 'VMORD:'], [f'v{T+4}', 's7'] + R('s', S_WQ, 4))
    if NPREW == 3:
        dma_wq(p, 2, 0); dma_wq(p, 2, 1)
    if int(E('K0G', 20)) < 0:
        dma_kv(p, 'K', 0, KSLOT[0])
    if int(E('WOG', 44)) < 0:
        dma_wo(p, (0, 1, 2, 3))
    pre = p.ops
    p = Prog()
    k1_main(p)
    body = schedule(p.ops, True, 'k1')
    win, body4, epi = phase4()
    lab = [Op('L_stored:', 'label')]
    emit(L, finish(pre + body + lab + win + body4 + epi, 'main'))
    if STAMP:
        stamps_out(L, NSTAMP, 'L_k1_end')
    L += ['L_k1_end:', '  s_endpgm', 'L_codeend:']
    redo_path(L)


def desc(L, name):
    L += ['.section .rodata,"a"', '.p2align 6', f'.amdhsa_kernel {name}', '  .amdhsa_next_free_vgpr 512',
          '  .amdhsa_next_free_sgpr 102', '  .amdhsa_accum_offset 256', '  .amdhsa_group_segment_fixed_size 0',
          '  .amdhsa_kernarg_size 64', '  .amdhsa_user_sgpr_count 2', '  .amdhsa_user_sgpr_kernarg_segment_ptr 1',
          '  .amdhsa_system_sgpr_workgroup_id_x 1', '.end_amdhsa_kernel']


def main():
    out = sys.argv[1]
    L = ['; @launch grid=(256,1,1) block=(256,1,1) lds=163840',
         '.amdgcn_target "amdgcn-amd-amdhsa--gfx950"', '.text']
    gen_k1(L, KNAME)
    desc(L, KNAME)
    open(out, 'w').write('\n'.join(L) + '\n')


if __name__ == '__main__':
    main()
```
